```python
import torch

def _softmax(x, axis=-1):
    return torch.softmax(x, dim=axis)
def _gelu(x):
    return torch.nn.functional.gelu(x, approximate="tanh")
def _silu(x):
    return torch.nn.functional.silu(x)
def _sigmoid(x):
    return torch.sigmoid(x)
def _layernorm(x, axis=-1, eps=1e-5):
    m = x.mean(dim=axis, keepdim=True)
    v = x.var(dim=axis, keepdim=True, unbiased=False)
    return (x - m) / torch.sqrt(v + eps)
def _scatter_add(tgt, idx, src, axis=0):
    return tgt.clone().index_add_(axis, idx, src)
def _segment_sum(src, seg, n):
    out = torch.zeros((n,) + src.shape[1:], dtype=src.dtype)
    return out.index_add_(0, seg, src)
def _pad(x, pw):
    flat = tuple(v for pair in reversed(pw) for v in pair)
    return torch.nn.functional.pad(x, flat)

kernel_name = 'concat_heads__gqa_block_cached__gqa_block_cached__near_ridge'

def setup_inputs():

    _w = (lambda a: (lambda t: t.to(torch.bfloat16) if t.is_floating_point() else t)(torch.as_tensor(a)))
    def _A_setup():
        B, Sq, D = 16, 96, 512
        Hq, Hkv, Sk, Dh = 32, 32, 512, 128
        assert Hq % Hkv == 0, (Hq, Hkv)
        return {
            "x": _w((lambda *s: torch.randn(*s, dtype=torch.bfloat16) * 0.8)(B, Sq, D)),
            "k_cache": _w((lambda *s: torch.randn(*s, dtype=torch.bfloat16) * 0.8)(B, Hkv, Sk, Dh)),
            "v_cache": _w((lambda *s: torch.randn(*s, dtype=torch.bfloat16) * 0.05)(B, Hkv, Sk, Dh)),
            "wq": _w((lambda *s: torch.randn(*s, dtype=torch.bfloat16) * 0.8)(D, Hq * Dh) * (D ** -0.5)),
            "wo": _w((lambda *s: torch.randn(*s, dtype=torch.bfloat16) * 0.05)(Hq * Dh, D) * ((Hq * Dh) ** -0.5)),
        }
    _A_in = _A_setup()

    def _B_setup():
        B, Sq, D = 16, 96, 512
        Hq, Hkv, Sk, Dh = 32, 32, 512, 128
        assert Hq % Hkv == 0, (Hq, Hkv)
        return {
            "x": _w((lambda *s: torch.randn(*s, dtype=torch.bfloat16) * 0.8)(B, Sq, D)),
            "k_cache": _w((lambda *s: torch.randn(*s, dtype=torch.bfloat16) * 0.8)(B, Hkv, Sk, Dh)),
            "v_cache": _w((lambda *s: torch.randn(*s, dtype=torch.bfloat16) * 0.05)(B, Hkv, Sk, Dh)),
            "wq": _w((lambda *s: torch.randn(*s, dtype=torch.bfloat16) * 0.8)(D, Hq * Dh) * (D ** -0.5)),
            "wo": _w((lambda *s: torch.randn(*s, dtype=torch.bfloat16) * 0.05)(Hq * Dh, D) * ((Hq * Dh) ** -0.5)),
        }
    _B_in = _B_setup()

    return {
        "A_x": _A_in["x"],
        "A_k_cache": _A_in["k_cache"],
        "A_v_cache": _A_in["v_cache"],
        "A_wq": _A_in["wq"],
        "A_wo": _A_in["wo"],
        "B_x": _B_in["x"],
        "B_k_cache": _B_in["k_cache"],
        "B_v_cache": _B_in["v_cache"],
        "B_wq": _B_in["wq"],
        "B_wo": _B_in["wo"],
    }

def reference(A_x, A_k_cache, A_v_cache, A_wq, A_wo, B_x, B_k_cache, B_v_cache, B_wq, B_wo):
    def _A_ref(x, k_cache, v_cache, wq, wo):
        B, Sq, D = x.shape
        Hq, Dh = 32, 128
        Hkv = k_cache.shape[1]
        rep = Hq // Hkv
        q = (lambda x, *d: x.permute(*d))((x @ wq).reshape(B, Sq, Hq, Dh), 0, 2, 1, 3)
        k = (lambda x, n, axis: torch.repeat_interleave(x, n, dim=axis))(k_cache, rep, axis=1)
        v = (lambda x, n, axis: torch.repeat_interleave(x, n, dim=axis))(v_cache, rep, axis=1)
        scores = torch.einsum("bhqd,bhkd->bhqk", q, k) * (Dh ** -0.5)
        p = _softmax(scores, axis=-1)
        o = torch.einsum("bhqk,bhkd->bhqd", p, v)
        return (lambda x, *d: x.permute(*d))(o, 0, 2, 1, 3).reshape(B, Sq, Hq * Dh) @ wo

    def _B_ref(x, k_cache, v_cache, wq, wo):
        B, Sq, D = x.shape
        Hq, Dh = 32, 128
        Hkv = k_cache.shape[1]
        rep = Hq // Hkv
        q = (lambda x, *d: x.permute(*d))((x @ wq).reshape(B, Sq, Hq, Dh), 0, 2, 1, 3)
        k = (lambda x, n, axis: torch.repeat_interleave(x, n, dim=axis))(k_cache, rep, axis=1)
        v = (lambda x, n, axis: torch.repeat_interleave(x, n, dim=axis))(v_cache, rep, axis=1)
        scores = torch.einsum("bhqd,bhkd->bhqk", q, k) * (Dh ** -0.5)
        p = _softmax(scores, axis=-1)
        o = torch.einsum("bhqk,bhkd->bhqd", p, v)
        return (lambda x, *d: x.permute(*d))(o, 0, 2, 1, 3).reshape(B, Sq, Hq * Dh) @ wo

    a = _A_ref(A_x, A_k_cache, A_v_cache, A_wq, A_wo)
    b = _B_ref(B_x, B_k_cache, B_v_cache, B_wq, B_wo)
    return torch.concatenate([a, b], axis=-1)
```

```python
import re

TRANS = ("v_exp_f32", "v_log_f32", "v_rcp_f32", "v_rsq_f32", "v_sqrt_f32", "v_sin_f32", "v_cos_f32")


def v(i, n=1):
    return f"v{i}" if n == 1 else f"v[{i}:{i+n-1}]"


def a(i, n=1):
    return f"a{i}" if n == 1 else f"a[{i}:{i+n-1}]"


def s(i, n=1):
    return f"s{i}" if n == 1 else f"s[{i}:{i+n-1}]"


_reg_re = re.compile(r"^-?(?:abs\()?([vas])(?:(\d+)|\[(\d+):(\d+)\])\)?$")


def regs_of(tok):
    tok = tok.strip()
    if tok in ("vcc", "exec", "m0", "scc"):
        return [tok]
    if tok in ("vcc_lo", "vcc_hi"):
        return ["vcc"]
    m = _reg_re.match(tok)
    if not m:
        return []
    f = m.group(1)
    if m.group(2) is not None:
        return [(f, int(m.group(2)))]
    return [(f, i) for i in range(int(m.group(3)), int(m.group(4)) + 1)]


class Emit:
    def __init__(self):
        self.lines = []
        self.idx = 0
        self.valu_w = {}
        self.trans_w = {}
        self.mfma_w = {}
        self.mfma_c = {}
        self.valu_sw = {}
        self.store_d = {}
        self.m0_w = -100
        self.ds_out = []
        self.vm_out = []
        self.ninstr = 0
        self.nnop = 0

    def raw(self, text):
        self.lines.append(text)

    def comment(self, text):
        self.lines.append("  ; " + text)

    def _nop(self, n):
        while n > 0:
            k = min(n, 16)
            self.lines.append(f"  s_nop {k-1}")
            self.idx += k
            self.nnop += k
            n -= k

    def label(self, name, clean=True):
        if clean:
            self.flush()
        self.lines.append(f"{name}:")

    def flush(self, lgkm=True):
        need = 0
        for d, dist in ((self.valu_w, 2), (self.trans_w, 1), (self.mfma_c, 7), (self.valu_sw, 5), (self.store_d, 2)):
            for r, i in d.items():
                need = max(need, dist - (self.idx - i - 1))
        for r, (i, rng) in self.mfma_w.items():
            need = max(need, 12 - (self.idx - i - 1))
        need = max(need, 1 - (self.idx - self.m0_w - 1))
        if lgkm and self.ds_out:
            self.I("s_waitcnt lgkmcnt(0)")
            need -= 1
        if need > 0:
            self._nop(need)
        self.valu_w.clear(); self.trans_w.clear(); self.mfma_w.clear(); self.mfma_c.clear()
        self.valu_sw.clear(); self.store_d.clear()

    def snapshot(self):
        return dict(idx=self.idx, valu_w=dict(self.valu_w), trans_w=dict(self.trans_w), mfma_w=dict(self.mfma_w),
                    mfma_c=dict(self.mfma_c), valu_sw=dict(self.valu_sw), store_d=dict(self.store_d), m0_w=self.m0_w,
                    nds=len(self.ds_out))

    def join(self, name, snap):
        assert len(self.ds_out) == snap["nds"] == 0, "DS ops outstanding across conditional block"
        shift = self.idx - snap["idx"]
        for key in ("valu_w", "trans_w", "mfma_c", "valu_sw", "store_d"):
            cur = getattr(self, key)
            for r, i in snap[key].items():
                cur[r] = max(cur.get(r, -1000), i + shift)
        for r, (i, rng) in snap["mfma_w"].items():
            c = self.mfma_w.get(r)
            if c is None or c[0] < i + shift:
                if c is not None and c[1] != rng:
                    self.mfma_w[r] = (i + shift, (-1, -1))
                else:
                    self.mfma_w[r] = (i + shift, rng)
            elif c[1] != rng:
                self.mfma_w[r] = (c[0], (-1, -1))
        self.m0_w = max(self.m0_w, snap["m0_w"] + shift)
        self.lines.append(f"{name}:")

    def I(self, text, tag=None):
        text = text.strip()
        mn, _, rest = text.partition(" ")
        ops_part = rest.strip()
        toks = [t.strip() for t in ops_part.split(",")] if ops_part else []
        mods = []
        if toks:
            last = toks[-1].split()
            toks[-1] = last[0] if last else ""
            mods = last[1:]
        reads, writes = [], []
        kind = "salu"
        if mn.startswith("v_mfma"):
            kind = "mfma"
            D, A_, B_, C_ = [regs_of(t) for t in toks[:4]]
            writes = D
            reads = A_ + B_ + C_
        elif mn.startswith("ds_read"):
            kind = "ds"
            writes = regs_of(toks[0]); reads = regs_of(toks[1])
        elif mn.startswith("ds_write"):
            kind = "ds"
            reads = sum((regs_of(t) for t in toks), [])
        elif mn.startswith("buffer_load") or mn.startswith("global_load"):
            kind = "vm"
            if "lds" in mods:
                reads = sum((regs_of(t) for t in toks), []) + ["m0"]
            else:
                writes = regs_of(toks[0]); reads = sum((regs_of(t) for t in toks[1:]), [])
        elif mn.startswith("buffer_store") or mn.startswith("global_store") or mn.startswith("buffer_atomic") or mn.startswith("global_atomic"):
            kind = "vm"
            reads = sum((regs_of(t) for t in toks), [])
            if "atomic" in mn and "sc0" in mods:
                writes = regs_of(toks[0])
        elif mn.startswith("buffer_wbl2") or mn.startswith("buffer_inv"):
            kind = "vm"
        elif mn.startswith("v_"):
            kind = "valu"
            if mn.startswith("v_permlane32_swap") or mn.startswith("v_permlane16_swap"):
                writes = regs_of(toks[0]) + regs_of(toks[1]); reads = list(writes)
            elif mn.startswith("v_nop"):
                pass
            else:
                writes = regs_of(toks[0])
                reads = sum((regs_of(t) for t in toks[1:]), [])
                if mn.startswith("v_fmac") or mn.startswith("v_writelane"):
                    reads += writes
                if "_co_" in mn:
                    writes = writes + regs_of(toks[1])
                    reads = sum((regs_of(t) for t in toks[2:]), [])
                if mn.startswith("v_cndmask") and len(toks) == 3:
                    reads.append("vcc")
        else:
            if mn in ("s_waitcnt", "s_barrier", "s_nop", "s_endpgm", "s_branch", "s_setprio", "s_sleep") or mn.startswith("s_cbranch"):
                pass
            elif mn.startswith("s_cmp"):
                reads = sum((regs_of(t) for t in toks), [])
            elif mn.startswith("s_load") or mn.startswith("s_memtime") or mn.startswith("s_memrealtime"):
                writes = regs_of(toks[0]); reads = sum((regs_of(t) for t in toks[1:]), [])
            else:
                writes = regs_of(toks[0]) if toks else []
                reads = sum((regs_of(t) for t in toks[1:]), [])

        if mn == "s_waitcnt":
            m = re.search(r"lgkmcnt\((\d+)\)", text)
            if m:
                n = int(m.group(1))
                while len(self.ds_out) > n:
                    self.ds_out.pop(0)
            m = re.search(r"vmcnt\((\d+)\)", text)
            if m:
                n = int(m.group(1))
                while len(self.vm_out) > n:
                    self.vm_out.pop(0)
        else:
            touched = set(reads) | set(writes)
            k = -1
            for i, dst in enumerate(self.ds_out):
                if dst & touched:
                    k = i
            if k >= 0:
                n = len(self.ds_out) - k - 1
                self.I(f"s_waitcnt lgkmcnt({min(n,15)})")
            if kind == "ds" and len(self.ds_out) >= 15:
                self.I("s_waitcnt lgkmcnt(14)")

        need = 0

        def req(i, dist):
            nonlocal need
            need = max(need, dist - (self.idx - i - 1))

        if kind == "mfma":
            for r in reads:
                if r in self.valu_w: req(self.valu_w[r], 2)
            for r in A_ + B_:
                if r in self.mfma_w: req(self.mfma_w[r][0], 12)
            crng = (C_[0], len(C_)) if C_ else None
            for r in C_:
                if r in self.mfma_w:
                    i, rng = self.mfma_w[r]
                    if rng != crng:
                        req(i, 10)
            if not C_ or C_ != D:
                for r in D:
                    if r in self.mfma_w and not (C_ and r in C_):
                        req(self.mfma_w[r][0], 12) if self.mfma_w[r][1] != (D[0], len(D)) else None
        elif kind == "valu":
            for r in set(reads) | set(writes):
                if r in self.mfma_w: req(self.mfma_w[r][0], 12)
            for r in writes:
                if r in self.mfma_c: req(self.mfma_c[r], 7)
                if r in self.store_d: req(self.store_d[r], 2)
            for r in reads:
                if r in self.trans_w: req(self.trans_w[r], 1)
                if r in self.valu_sw: req(self.valu_sw[r], 2)
            if mn.startswith("v_permlane"):
                for r in reads:
                    if r in self.valu_w: req(self.valu_w[r], 2)
            if mn.startswith("v_readfirstlane") or mn.startswith("v_readlane"):
                for r in reads:
                    if r in self.valu_w: req(self.valu_w[r], 1)
        elif kind in ("ds", "vm"):
            for r in set(reads) | set(writes):
                if r in self.mfma_w: req(self.mfma_w[r][0], 12)
            for r in writes:
                if r in self.mfma_c: req(self.mfma_c[r], 7)
                if r in self.store_d: req(self.store_d[r], 2)
            for r in reads:
                if r in self.valu_sw: req(self.valu_sw[r], 5)
                if r in self.trans_w: req(self.trans_w[r], 1)
            if "m0" in reads:
                req(self.m0_w, 1)
        else:
            for r in reads:
                if r in self.valu_sw: req(self.valu_sw[r], 3)
            if mn.startswith("s_cbranch_vcc") and "vcc" in self.valu_sw:
                req(self.valu_sw["vcc"], 5)
        if need > 0:
            self._nop(need)

        self.lines.append("  " + text)
        self.ninstr += 1
        i = self.idx
        if mn == "s_nop":
            self.idx += int(toks[0], 0) + 1
        else:
            self.idx += 1
        if kind == "mfma":
            for r in D:
                self.mfma_w[r] = (i, (D[0], len(D)))
                self.valu_w.pop(r, None); self.trans_w.pop(r, None)
            for r in C_:
                self.mfma_c[r] = i
        elif kind == "valu":
            for r in writes:
                if isinstance(r, tuple) and r[0] in "va":
                    self.valu_w[r] = i
                    self.mfma_w.pop(r, None)
                    if mn.split("_e")[0] in TRANS or mn in TRANS:
                        self.trans_w[r] = i
                    else:
                        self.trans_w.pop(r, None)
                else:
                    self.valu_sw[r] = i
        elif kind == "ds":
            self.ds_out.append(set(writes))
            for r in writes:
                self.mfma_w.pop(r, None); self.valu_w.pop(r, None); self.trans_w.pop(r, None)
        elif kind == "vm":
            self.vm_out.append(tag)
            for r in writes:
                self.mfma_w.pop(r, None); self.valu_w.pop(r, None); self.trans_w.pop(r, None)
            if ("store" in mn or "atomic" in mn) and ("x4" in mn or "x3" in mn):
                for r in regs_of(toks[0] if mn.startswith("buffer") else toks[1]):
                    self.store_d[r] = i
        else:
            if "m0" in writes:
                self.m0_w = i
            for r in writes:
                self.valu_sw.pop(r, None)

    def wait_vm_tag(self, tag, extra=""):
        k = -1
        for i, t in enumerate(self.vm_out):
            if t == tag:
                k = i
        if k < 0:
            if extra:
                self.I(f"s_waitcnt {extra}")
            return
        n = len(self.vm_out) - k - 1
        assert n <= 63
        self.I(f"s_waitcnt vmcnt({n}) {extra}")

    def text(self):
        return "\n".join(self.lines) + "\n"
```

```python
import sys, struct, math
from emit import Emit, v, a, s

NAME = "concat_heads__gqa_block_cached__gqa_block_cached__near_ridge"
MFMA = "v_mfma_f32_32x32x16_bf16"

KV_BASE = 0
W_BASE = 65536
Q_BASE = 131072
LDS_BYTES = 155648

SRD_K, SRD_V, SRD_WQ, SRD_WO, SRD_X, SRD_WS = 8, 12, 16, 20, 24, 28
S_HG, S_B, S_P, S_WAVE, S_TAU, S_C, S_NEGC = 58, 59, 60, 61, 62, 63, 64
S_T0, S_T1, S_T2 = 65, 66, 67
S_WO = 68
S_WM = 69
S_PM = 72
S_PG = 78
S_KOFF, S_VOFF, S_QCOL, S_QCOLN = 84, 85, 86, 87
S_XOFF = 88
S_WSOFF = 89
S_WOB = 90
S_PB = 91
S_QW = 92


def f32bits(x):
    return struct.unpack("<I", struct.pack("<f", x))[0]


class Cfg:
    kv_nt = " nt"
    w_pol = ""
    x_pol = ""
    st_pol = ""
    red_ld_pol = ""
    npre = 6


def prologue_common(e, cfg):
    e.I("s_cmp_ge_u32 s2, 256")
    e.I("s_cbranch_scc1 L_done")
    e.I("s_load_dwordx16 s[36:51], s[0:1], 0")
    e.I("s_load_dwordx4 s[52:55], s[0:1], 64")
    e.I("s_load_dwordx2 s[56:57], s[0:1], 96")
    e.I(f"s_and_b32 s{S_HG}, s2, 7")
    e.I(f"s_lshr_b32 s{S_PB}, s2, 3")
    e.I(f"s_and_b32 s{S_B}, s{S_PB}, 15")
    e.I(f"s_lshr_b32 s{S_P}, s{S_PB}, 4")
    e.I("v_lshrrev_b32 v1, 6, v0")
    e.I("v_and_b32 v241, 63, v0")
    e.I(f"v_readfirstlane_b32 s{S_WAVE}, v1")
    e.I(f"s_mov_b32 s{S_C}, 0x{f32bits(128 ** -0.5 * math.log2(math.e)):08x}")
    e.I(f"s_mov_b32 s{S_NEGC}, 0x{f32bits(-(128 ** -0.5) * math.log2(math.e)):08x}")
    e.I("s_waitcnt lgkmcnt(0)")
    e.I(f"s_cmp_eq_u32 s{S_P}, 0")
    for srd, pa, pb, size in ((SRD_X, 36, 46, 16 * 96 * 512 * 2), (SRD_K, 38, 48, 1 << 26), (SRD_V, 40, 50, 1 << 26),
                              (SRD_WQ, 42, 52, 1 << 22), (SRD_WO, 44, 54, 1 << 22)):
        e.I(f"s_cselect_b32 s{srd}, s{pa}, s{pb}")
        e.I(f"s_cselect_b32 s{srd+1}, s{pa+1}, s{pb+1}")
        e.I(f"s_mov_b32 s{srd+2}, 0x{size:x}")
        e.I(f"s_mov_b32 s{srd+3}, 0x20000")
    e.I(f"s_mov_b32 s{SRD_WS}, s56")
    e.I(f"s_mov_b32 s{SRD_WS+1}, s57")
    e.I(f"s_mov_b32 s{SRD_WS+2}, 0x{256*96*1024:x}")
    e.I(f"s_mov_b32 s{SRD_WS+3}, 0x20000")
    e.I(f"s_lshl_b32 s{S_WOB}, s{S_HG}, 19")
    e.I(f"s_mov_b32 s{S_TAU}, 0")
    e.I(f"s_cmp_eq_u32 s{S_WAVE}, 3")
    e.I("s_cbranch_scc1 L_loader")


def pat_tr(e, dst, L, t0, t1, hi_sh, r_sh, swz_sh, perm, base):
    e.I(f"v_lshrrev_b32 v{dst}, 5, v{L}")
    e.I(f"v_lshlrev_b32 v{dst}, {hi_sh}, v{dst}")
    e.I(f"v_bfe_u32 v{t0}, v{L}, 2, 2")
    e.I(f"v_lshl_add_u32 v{dst}, v{t0}, {r_sh}, v{dst}")
    e.I(f"v_lshrrev_b32 v{t0}, {swz_sh}, v{t0}")
    e.I(f"v_lshl_add_u32 v{dst}, v{t0}, 6, v{dst}")
    e.I(f"v_bfe_u32 v{t0}, v{L}, 4, 1")
    e.I(f"v_lshl_add_u32 v{dst}, v{t0}, 5, v{dst}")
    if perm:
        e.I(f"v_and_b32 v{t0}, 1, v{L}")
        e.I(f"v_lshl_add_u32 v{dst}, v{t0}, 4, v{dst}")
        e.I(f"v_bfe_u32 v{t0}, v{L}, 1, 1")
        e.I(f"v_lshl_add_u32 v{dst}, v{t0}, 3, v{dst}")
    else:
        e.I(f"v_and_b32 v{t0}, 3, v{L}")
        e.I(f"v_lshl_add_u32 v{dst}, v{t0}, 3, v{dst}")
    if base:
        e.I(f"v_add_u32 v{dst}, 0x{base:x}, v{dst}")


def pat_wqv(e, dst, L, t0, t1):
    e.I(f"v_bfe_u32 v{t0}, v{L}, 4, 1")
    e.I(f"v_lshlrev_b32 v{t0}, 2, v{t0}")
    e.I(f"v_and_b32 v{t1}, 7, v{L}")
    e.I(f"v_xor_b32 v{t0}, v{t0}, v{t1}")
    e.I(f"v_lshlrev_b32 v{t0}, 4, v{t0}")
    e.I(f"v_lshrrev_b32 v{t1}, 3, v{L}")
    e.I(f"v_lshl_add_u32 v{dst}, v{t1}, 13, v{t0}")


def pat_wov(e, dst, L, t0, t1):
    e.I(f"v_lshrrev_b32 v{t0}, 5, v{L}")
    e.I(f"v_lshlrev_b32 v{t1}, 2, v{t0}")
    e.I(f"v_and_b32 v{dst}, 31, v{L}")
    e.I(f"v_xor_b32 v{dst}, v{dst}, v{t1}")
    e.I(f"v_lshlrev_b32 v{dst}, 4, v{dst}")
    e.I(f"v_lshl_add_u32 v{dst}, v{t0}, 10, v{dst}")


def pat_xv(e, dst, L, t0):
    e.I(f"v_and_b32 v{dst}, 31, v{L}")
    e.I(f"v_lshlrev_b32 v{dst}, 10, v{dst}")
    e.I(f"v_lshrrev_b32 v{t0}, 5, v{L}")
    e.I(f"v_lshl_add_u32 v{dst}, v{t0}, 4, v{dst}")


O_ACC, QF, OF, SR, P0, FST = 0, 64, 96, 128, 144, 160
NF = 12
KA, VA, WA, QA, WOV, WQA, WQV, XV = 208, 216, 220, 224, 225, 228, 230, 231
M_, L_, ALPHA, LFIN, NMC, T0, T1, SUM0, SUM1, LANE = 232, 233, 234, 235, 236, 237, 238, 239, 240, 241
TMP = 242
STV = 248


def run_mfmas(e, items, fillers, npre, f0=0):
    n = len(items)

    def issue(i):
        fr = FST + 4 * ((f0 + i) % NF)
        for t in items[i][0](fr):
            e.I(t)
    for i in range(min(npre, n)):
        issue(i)
    for t in fillers.get(-1, []):
        e.I(t)
    for i in range(n):
        fr = FST + 4 * ((f0 + i) % NF)
        e.I(items[i][1](fr))
        if i + npre < n:
            issue(i + npre)
        for t in fillers.get(i, []):
            e.I(t)


def tr2(addr, off, estep):
    return lambda fr: [f"ds_read_b64_tr_b16 {v(fr,2)}, v{addr} offset:{off}",
                       f"ds_read_b64_tr_b16 {v(fr+2,2)}, v{addr} offset:{off+estep}"]


def items_S(slot):
    it = []
    for ks in range(8):
        rd = (lambda ks: lambda fr: [f"ds_read_b128 {v(fr,4)}, v{KA+ks} offset:{KV_BASE + slot*16384}"])(ks)
        mf = (lambda ks: lambda fr: f"{MFMA} {v(SR,16)}, {v(fr,4)}, {v(QF+4*ks,4)}, " + ("0" if ks == 0 else v(SR, 16)))(ks)
        it.append((rd, mf))
    return it


def items_PV(slot, pbuf):
    it = []
    for ks in range(2):
        for dt in range(4):
            rd = tr2(VA + dt, KV_BASE + slot * 16384 + 8192 + ks * 4096, 2048)
            mf = (lambda ks, dt: lambda fr: f"{MFMA} {v(O_ACC+16*dt,16)}, {v(fr,4)}, {v(P0+8*pbuf+4*ks,4)}, {v(O_ACC+16*dt,16)}")(ks, dt)
            it.append((rd, mf))
    return it


def items_OP(slot, nh, ofr):
    it = []
    for n8 in range(8):
        nt = nh * 8 + n8
        rd = tr2(WA + (n8 & 3), slot * 16384 + (n8 >> 2) * 256, 4096)
        mf = (lambda nt: lambda fr: f"{MFMA} {a(16*nt,16)}, {v(fr,4)}, {v(ofr,4)}, {a(16*nt,16)}")(nt)
        it.append((rd, mf))
    return it


def softmax_ops(pbuf):
    S = lambda i: f"v{SR+i}"
    o = []
    o.append(f"v_max3_f32 v{T0}, {S(0)}, {S(1)}, {S(2)}")
    o.append(f"v_max3_f32 v{T1}, {S(3)}, {S(4)}, {S(5)}")
    o.append(f"v_max3_f32 v{T0}, v{T0}, {S(6)}, {S(7)}")
    o.append(f"v_max3_f32 v{T1}, v{T1}, {S(8)}, {S(9)}")
    o.append(f"v_max3_f32 v{T0}, v{T0}, {S(10)}, {S(11)}")
    o.append(f"v_max3_f32 v{T1}, v{T1}, {S(12)}, {S(13)}")
    o.append(f"v_max3_f32 v{T0}, v{T0}, {S(14)}, {S(15)}")
    o.append(f"v_max3_f32 v{T0}, v{T0}, v{T1}, v{M_}")
    o.append(f"v_mov_b32 v{T1}, v{T0}")
    o.append(f"v_permlane32_swap_b32 v{T0}, v{T1}")
    o.append(f"v_max_f32 v{T0}, v{T0}, v{T1}")
    o.append(f"v_sub_f32 v{T1}, v{M_}, v{T0}")
    o.append(f"v_mul_f32 v{NMC}, s{S_NEGC}, v{T0}")
    o.append(f"v_mul_f32 v{T1}, s{S_C}, v{T1}")
    o.append(f"v_mov_b32 v{M_}, v{T0}")
    o.append(f"v_exp_f32 v{ALPHA}, v{T1}")
    seq = []
    for i in range(16):
        seq.append(f"v_fma_f32 {S(i)}, {S(i)}, s{S_C}, v{NMC}")
    ex = [f"v_exp_f32 {S(i)}, {S(i)}" for i in range(16)]
    o.append(seq[0]); o.append(seq[1])
    for i in range(16):
        o.append(ex[i])
        if i + 2 < 16:
            o.append(seq[i + 2])
        if i >= 2 and i % 2 == 0:
            j = i - 2
            o += pair_ops(j, pbuf)
    o += pair_ops(14, pbuf)
    o.append(f"v_add_f32 v{SUM0}, v{SUM0}, v{SUM1}")
    o.append(f"v_fma_f32 v{L_}, v{L_}, v{ALPHA}, v{SUM0}")
    return o


def pair_ops(j, pbuf):
    S = lambda i: f"v{SR+i}"
    o = []
    if j == 0:
        o.append(f"v_add_f32 v{SUM0}, {S(0)}, {S(1)}")
    elif j == 2:
        o.append(f"v_add_f32 v{SUM1}, {S(2)}, {S(3)}")
    else:
        o.append(f"v_add_f32 v{SUM0}, v{SUM0}, {S(j)}")
        o.append(f"v_add_f32 v{SUM1}, v{SUM1}, {S(j+1)}")
    o.append(f"v_cvt_pk_bf16_f32 v{P0+8*pbuf+j//2}, {S(j)}, {S(j+1)}")
    return o


def spread(ops, slots):
    d = {}
    n = len(slots)
    for k, sl in enumerate(slots):
        lo = len(ops) * k // n
        hi = len(ops) * (k + 1) // n
        d.setdefault(sl, []).extend(ops[lo:hi])
    return d


def merge(*ds):
    r = {}
    for d in ds:
        for k, x in d.items():
            r.setdefault(k, []).extend(x)
    return r


def finalize_ops():
    o = []
    o.append(f"v_mov_b32 v{T1}, v{LFIN}")
    o.append(f"v_permlane32_swap_b32 v{LFIN}, v{T1}")
    o.append(f"v_add_f32 v{T1}, v{LFIN}, v{T1}")
    o.append(f"v_rcp_f32 v{T1}, v{T1}")
    for k in range(32):
        o.append(f"v_mul_f32 v{O_ACC+2*k}, v{O_ACC+2*k}, v{T1}")
        o.append(f"v_mul_f32 v{O_ACC+2*k+1}, v{O_ACC+2*k+1}, v{T1}")
        o.append(f"v_cvt_pk_bf16_f32 v{OF+k}, v{O_ACC+2*k}, v{O_ACC+2*k+1}")
    return o


def wo3_plan():
    nh0 = [(W_BASE + 0 * 16384 + 8192, 50), (W_BASE + 1 * 16384 + 8192, 51), (W_BASE + 2 * 16384 + 8192, 52),
           (W_BASE + 3 * 16384 + 8192, 53), (Q_BASE, 54), (Q_BASE + 8192, 55), (Q_BASE + 16384, 56),
           (KV_BASE + 0, 61)]
    nh1 = [(KV_BASE + 16384, 62), (KV_BASE + 16384 + 8192, 62), (W_BASE + 16384, 62),
           (KV_BASE + 32768, 63), (KV_BASE + 32768 + 8192, 63), (W_BASE + 32768, 63),
           (KV_BASE + 49152, 64), (KV_BASE + 49152 + 8192, 64)]
    plan = {}
    for sidx in range(8):
        plan[2 * sidx] = nh0[sidx]
        plan[2 * sidx + 1] = nh1[sidx]
    return plan


def compute_wave(e, cfg):
    L = LANE
    t0, t1 = TMP, TMP + 1
    pat_wqv(e, WQV, L, t0, t1)
    for k in range(6):
        e.I(f"s_mul_i32 s{S_T0}, s{S_WAVE}, 6")
        e.I(f"s_add_u32 s{S_T0}, s{S_T0}, {k}")
        e.I(f"s_min_u32 s{S_T0}, s{S_T0}, 15")
        e.I(f"s_lshl_b32 s{S_PM+k}, s{S_T0}, 10")
        e.I(f"s_add_u32 s{S_PM+k}, s{S_PM+k}, 0x{W_BASE:x}")
        e.I(f"s_and_b32 s{S_T1}, s{S_T0}, 7")
        e.I(f"s_lshl_b32 s{S_T1}, s{S_T1}, 16")
        e.I(f"s_lshr_b32 s{S_T0}, s{S_T0}, 3")
        e.I(f"s_lshl_b32 s{S_T0}, s{S_T0}, 7")
        e.I(f"s_add_u32 s{S_T1}, s{S_T1}, s{S_T0}")
        e.I(f"s_lshl_b32 s{S_T0}, s{S_HG}, 10")
        e.I(f"s_add_u32 s{S_PG+k}, s{S_T1}, s{S_T0}")

    def issue_pstage(pi):
        for k in range(6):
            e.I(f"s_add_u32 m0, s{S_PM+k}, {(pi % 4) * 16384}")
            e.I(f"s_add_u32 s{S_T0}, s{S_PG+k}, {pi * 524288}")
            e.I(f"buffer_load_dwordx4 v{WQV}, {s(SRD_WQ,4)}, s{S_T0} offen{cfg.w_pol} lds", tag=("P", pi))
    issue_pstage(0)
    pat_xv(e, XV, L, t0)
    e.I(f"s_mul_i32 s{S_XOFF}, s{S_B}, 96")
    e.I(f"s_lshl_b32 s{S_T0}, s{S_WAVE}, 5")
    e.I(f"s_add_u32 s{S_XOFF}, s{S_XOFF}, s{S_T0}")
    e.I(f"s_lshl_b32 s{S_XOFF}, s{S_XOFF}, 10")
    for ks in range(32):
        e.I(f"buffer_load_dwordx4 {a(4*ks,4)}, v{XV}, {s(SRD_X,4)}, s{S_XOFF} offen offset:{ks*32}{cfg.x_pol}", tag="X")
    issue_pstage(1)
    issue_pstage(2)
    e.I(f"v_and_b32 v{t0}, 15, v{L}")
    e.I(f"v_lshrrev_b32 v{t1}, 5, v{L}")
    e.I(f"v_xor_b32 v{t0}, v{t0}, v{t1}")
    e.I(f"v_lshlrev_b32 v{t0}, 4, v{t0}")
    e.I(f"v_and_b32 v{t1}, 31, v{L}")
    e.I(f"v_lshl_add_u32 v{KA}, v{t1}, 8, v{t0}")
    for k in range(1, 8):
        e.I(f"v_xor_b32 v{KA+k}, {32*k}, v{KA}")
    pat_tr(e, VA, L, t0, t1, 10, 8, 0, False, 0)
    for k in range(1, 4):
        e.I(f"v_xor_b32 v{VA+k}, {64*k}, v{VA}")
    pat_tr(e, WA, L, t0, t1, 11, 9, 0, True, W_BASE)
    for k in range(1, 4):
        e.I(f"v_xor_b32 v{WA+k}, {64*k}, v{WA}")
    pat_tr(e, WQA, L, t0, t1, 10, 7, 1, True, W_BASE)
    e.I(f"v_xor_b32 v{WQA+1}, 64, v{WQA}")
    e.I(f"s_lshl_b32 s{S_T0}, s{S_WAVE}, 13")
    e.I(f"s_add_u32 s{S_T0}, s{S_T0}, 0x{Q_BASE:x}")
    e.I(f"v_lshlrev_b32 v{QA}, 4, v{L}")
    e.I(f"v_add_u32 v{QA}, s{S_T0}, v{QA}")
    pat_wov(e, t1 + 1, L, t0, t1)
    for k in range(3):
        e.I(f"s_mul_i32 s{S_T0}, s{S_WAVE}, 3")
        e.I(f"s_add_u32 s{S_T0}, s{S_T0}, {k}")
        e.I(f"s_min_u32 s{S_T0}, s{S_T0}, 7")
        e.I(f"s_lshl_b32 s{S_WM+k}, s{S_T0}, 10")
        e.I(f"s_add_u32 s{S_WM+k}, s{S_WM+k}, 0x{W_BASE:x}")
        e.I(f"s_and_b32 s{S_T1}, s{S_T0}, 1")
        e.I(f"s_lshl_b32 s{S_T1}, s{S_T1}, 7")
        e.I(f"s_lshl_b32 s{S_T0}, s{S_T0}, 11")
        e.I(f"v_xor_b32 v{WOV+k}, s{S_T1}, v{t1+1}")
        e.I(f"v_add_u32 v{WOV+k}, s{S_T0}, v{WOV+k}")
    e.I(f"s_sub_u32 s{S_WO}, s{S_WOB}, {8*16384-512}")
    e.I(f"s_mul_i32 s{S_WSOFF}, s2, 3")
    e.I(f"s_add_u32 s{S_WSOFF}, s{S_WSOFF}, s{S_WAVE}")
    e.I(f"s_lshl_b32 s{S_WSOFF}, s{S_WSOFF}, 15")
    e.I(f"v_lshlrev_b32 v{STV}, 4, v{L}")
    for i in range(128, 256):
        e.I(f"v_accvgpr_write_b32 a{i}, 0")
    for i in range(32):
        e.I(f"v_mov_b32 v{OF+i}, 0")
    for i in range(16):
        e.I(f"v_mov_b32 v{P0+i}, 0")
    e.I(f"v_mov_b32 v{L_}, 1.0")
    e.I(f"v_mov_b32 v{ALPHA}, 1.0")
    e.I(f"v_mov_b32 v{M_}, 0")
    e.wait_vm_tag("X")
    for pi in range(8):
        e.comment(f"pro-step {pi}")
        e.I("s_barrier")
        if pi + 3 <= 7:
            issue_pstage(pi + 3)
        items = []
        for s4 in range(4):
            ks = 4 * pi + s4
            for dt in range(4):
                rd = tr2(WQA + (dt & 1), (pi % 4) * 16384 + (dt >> 1) * 8192 + s4 * 2048, 512)
                mf = (lambda ks, dt: lambda fr: f"{MFMA} {v(O_ACC+16*dt,16)}, {v(fr,4)}, {a(4*ks,4)}, " + ("0" if ks == 0 else v(O_ACC + 16 * dt, 16)))(ks, dt)
                items.append((rd, mf))
        fill = {}
        if pi >= 1:
            fill = spread([f"v_accvgpr_write_b32 a{16*(pi-1)+i}, 0" for i in range(16)], list(range(16)))
        run_mfmas(e, items, fill, cfg.npre)
        if pi < 7:
            e.wait_vm_tag(("P", pi + 1), "lgkmcnt(0)")
    for i in range(16):
        e.I(f"v_accvgpr_write_b32 a{112+i}, 0")
    for k in range(32):
        e.I(f"v_cvt_pk_bf16_f32 v{QF+k}, v{O_ACC+2*k}, v{O_ACC+2*k+1}")
    for k in range(8):
        e.I(f"ds_write_b128 v{QA}, {v(QF+4*k,4)} offset:{k*1024}")
    for i in range(64):
        e.I(f"v_mov_b32 v{O_ACC+i}, 0")
    e.I("s_waitcnt lgkmcnt(0)")

    e.label("L_cloop")
    for pos in range(4):
        e.comment(f"main step pos {pos}")
        e.I("s_barrier")
        if pos == 0:
            e.I(f"s_and_b32 s{S_T0}, s{S_TAU}, 15")
            e.I(f"s_cmp_lg_u32 s{S_T0}, 0")
            e.I("s_cbranch_scc1 L_cq_skip")
            snap = e.snapshot()
            for k in range(8):
                e.I(f"ds_read_b128 {v(QF+4*k,4)}, v{QA} offset:{k*1024}")
            e.I(f"v_mov_b32 v{LFIN}, v{L_}")
            e.I(f"v_mov_b32 v{M_}, 0xff800000")
            e.I("s_waitcnt lgkmcnt(0)")
            e.join("L_cq_skip", snap)
        e.I(f"s_sub_u32 s{S_T0}, s{S_TAU}, {15 - pos}")
        e.I(f"s_cmp_gt_u32 s{S_T0}, 47")
        e.I(f"s_cbranch_scc1 L_cw_skip{pos}")
        snap = e.snapshot()
        for k in range(3):
            e.I(f"s_add_u32 m0, s{S_WM+k}, {((pos + 2) % 4) * 16384}")
            e.I(f"buffer_load_dwordx4 v{WOV+k}, {s(SRD_WO,4)}, s{S_WO} offen{cfg.w_pol} lds")
        e.join(f"L_cw_skip{pos}", snap)
        e.I(f"s_add_u32 s{S_WO}, s{S_WO}, {16384 - 512 if pos % 2 == 0 else 512}")
        c4 = (pos - 1) % 4
        items = items_S(pos) + items_PV(pos, (pos - 1) % 2) + items_OP(pos, c4 & 1, OF + 4 * (c4 >> 1))
        resc = [f"v_mul_f32 v{O_ACC+i}, v{O_ACC+i}, v{ALPHA}" for i in range(64)]
        fill = merge(spread(resc, [-1, 0, 1, 2, 3, 4, 5, 6]), spread(softmax_ops(pos % 2), list(range(9, 24))))
        run_mfmas(e, items, fill, cfg.npre)
        if pos == 0:
            e.I(f"s_and_b32 s{S_T0}, s{S_TAU}, 15")
            e.I(f"s_cmp_lg_u32 s{S_T0}, 0")
            e.I("s_cbranch_scc1 L_cshift")
            snap = e.snapshot()
            for t in finalize_ops():
                e.I(t)
            e.flush()
            e.I("s_branch L_cfin_done")
            e2 = snap
            e.join("L_cshift", snap)
            for i in range(24):
                e.I(f"v_mov_b32 v{OF+i}, v{OF+8+i}")
            e.label("L_cfin_done")
        if pos == 3:
            e.I(f"s_add_u32 s{S_TAU}, s{S_TAU}, 4")
            e.I(f"s_cmp_lt_u32 s{S_TAU}, 64")
        e.I("s_waitcnt vmcnt(3) lgkmcnt(0)")
    e.flush()
    e.I("s_cbranch_scc1 L_cloop")

    e.I("s_waitcnt vmcnt(0)")
    e.I("s_barrier")
    WB, WC = KA, KA + 4
    for k in range(4):
        e.I(f"v_subrev_u32 v{WB+k}, 0x10000, v{WA+k}")
        e.I(f"v_add_u32 v{WC+k}, 0x10000, v{WA+k}")
    e.I(f"v_mov_b32 v{LFIN}, v{L_}")
    items = items_OP(0, 1, OF + 4) + items_PV(0, 1)
    resc = [f"v_mul_f32 v{O_ACC+i}, v{O_ACC+i}, v{ALPHA}" for i in range(64)]
    run_mfmas(e, items, spread(resc, [-1, 0, 1, 2, 3, 4, 5, 6]), cfg.npre)
    for t in finalize_ops():
        e.I(t)
    plan = wo3_plan()

    def store_tile_ops(nt, tb):
        o = []
        for i in range(16):
            o.append(f"v_accvgpr_read_b32 v{tb+i}, a{16*nt+i}")
        for k in range(8):
            o.append(f"v_cvt_pk_bf16_f32 v{tb+k}, v{tb+2*k}, v{tb+2*k+1}")
        o.append(f"s_add_u32 s{S_T0}, s{S_WSOFF}, {nt*2048}")
        o.append(f"buffer_store_dwordx4 {v(tb,4)}, v{STV}, {s(SRD_WS,4)}, s{S_T0} offen{cfg.st_pol}")
        o.append(f"buffer_store_dwordx4 {v(tb+4,4)}, v{STV}, {s(SRD_WS,4)}, s{S_T0} offen offset:1024{cfg.st_pol}")
        return o
    for nh in range(2):
        if nh == 1:
            e.I("s_waitcnt lgkmcnt(0)")
            e.I("s_barrier")
        items = []
        fill = {}
        for n8 in range(8):
            nt = nh * 8 + n8
            for sidx in range(8):
                addr, _ = plan[2 * sidx + nh]
                if addr < W_BASE:
                    reg, off = WB, addr
                elif addr < Q_BASE:
                    reg, off = WA, addr - W_BASE
                else:
                    reg, off = WC, addr - Q_BASE
                rd = tr2(reg + (n8 & 3), off + (n8 >> 2) * 256, 4096)
                mf = (lambda nt, sidx: lambda fr: f"{MFMA} {a(16*nt,16)}, {v(fr,4)}, {v(OF+4*sidx,4)}, {a(16*nt,16)}")(nt, sidx)
                items.append((rd, mf))
            if nt >= 1:
                ops = store_tile_ops(nt - 1, O_ACC + 16 * ((nt - 1) % 4))
                fill = merge(fill, spread(ops, [8 * n8 + x for x in range(2, 8)]))
        run_mfmas(e, items, fill, cfg.npre)
    for t in store_tile_ops(15, O_ACC + 48):
        e.I(t)
    e.I("s_endpgm")


LACC, LF, LKV, LVV, LWQV, LWQA, LQW, LWOV, LXV, LT = 0, 96, 112, 116, 117, 118, 120, 121, 123, 124


def xreg(f):
    return a(4 * f, 4) if f < 64 else v(128 + 4 * (f - 64), 4)


def loader_wave(e, cfg):
    e.label("L_loader", clean=True)
    e.vm_out = []
    L = LT + 3
    t0, t1 = LT, LT + 1
    e.I(f"v_mov_b32 v{L}, v241")
    e.I(f"v_lshrrev_b32 v{t0}, 4, v{L}")
    e.I(f"v_and_b32 v{t1}, 15, v{L}")
    e.I(f"v_xor_b32 v{LKV}, v{t0}, v{t1}")
    e.I(f"v_lshlrev_b32 v{LKV}, 4, v{LKV}")
    e.I(f"v_lshl_add_u32 v{LKV}, v{t0}, 8, v{LKV}")
    for k in range(1, 4):
        e.I(f"v_xor_b32 v{LKV+k}, {64*k}, v{LKV}")
    e.I(f"v_lshlrev_b32 v{LVV}, 2, v{t0}")
    e.I(f"v_xor_b32 v{LVV}, v{LVV}, v{t1}")
    e.I(f"v_lshlrev_b32 v{LVV}, 4, v{LVV}")
    e.I(f"v_lshl_add_u32 v{LVV}, v{t0}, 8, v{LVV}")
    e.I(f"s_lshl_b32 s{S_KOFF}, s{S_B}, 22")
    e.I(f"s_add_u32 s{S_KOFF}, s{S_KOFF}, s{S_WOB}")
    e.I(f"s_mov_b32 s{S_VOFF}, s{S_KOFF}")

    def kv_ops(slot, tag, k=True, vv=True):
        o = []
        if k:
            for h4 in range(2):
                o.append((f"s_mov_b32 m0, {KV_BASE + slot*16384 + h4*4096}", None))
                for pq in range(4):
                    o.append((f"buffer_load_dwordx4 v{LKV+pq}, {s(SRD_K,4)}, s{S_KOFF} offen offset:{pq*1024}{cfg.kv_nt} lds", tag))
                o.append((f"s_add_u32 s{S_KOFF}, s{S_KOFF}, 4096", None))
        if vv:
            for h4 in range(2):
                o.append((f"s_mov_b32 m0, {KV_BASE + slot*16384 + 8192 + h4*4096}", None))
                for pq in range(4):
                    o.append((f"buffer_load_dwordx4 v{LVV}, {s(SRD_V,4)}, s{S_VOFF} offen offset:{pq*1024}{cfg.kv_nt} lds", tag))
                o.append((f"s_add_u32 s{S_VOFF}, s{S_VOFF}, 4096", None))
        return o

    def vm_guard():
        if len(e.vm_out) >= 63:
            e.I("s_waitcnt vmcnt(54)")

    def emit_ops(ops):
        for t, tag in ops:
            if t.startswith("buffer"):
                vm_guard()
            e.I(t, tag=tag)

    emit_ops(kv_ops(0, ("S", 0)))
    e.I(f"s_sub_u32 s{S_VOFF}, s{S_VOFF}, 8192")
    emit_ops(kv_ops(1, ("S", 1)))
    emit_ops(kv_ops(2, ("S", 2)))
    pat_wqv(e, LWQV, L, t0, t1)
    pat_tr(e, LWQA, L, t0, t1, 10, 7, 1, True, W_BASE + 8192)
    e.I(f"v_xor_b32 v{LWQA+1}, 64, v{LWQA}")
    e.I(f"v_lshlrev_b32 v{LQW}, 4, v{L}")
    e.I(f"v_add_u32 v{LQW}, 0x{Q_BASE:x}, v{LQW}")
    pat_wov(e, LWOV, L, t0, t1)
    e.I(f"v_xor_b32 v{LWOV+1}, 0x80, v{LWOV}")
    pat_xv(e, LXV, L, t0)
    e.I(f"s_mul_i32 s{S_XOFF}, s{S_B}, {96*1024}")
    e.I(f"s_lshl_b32 s{S_QCOL}, s{S_HG}, 10")
    e.I(f"s_add_u32 s{S_QCOL}, s{S_QCOL}, 256")
    e.I(f"s_add_u32 s{S_QCOLN}, s{S_QCOL}, 128")
    e.I(f"s_mov_b32 s{S_QW}, 0")

    def wq_ops(slot, cb, colreg, tag):
        o = []
        for pp in range(8):
            o.append((f"s_mov_b32 m0, {W_BASE + slot*16384 + 8192 + pp*1024}", None))
            o.append((f"s_add_u32 s{S_T0}, s{colreg}, {(64*cb + 8*pp) * 8192}", None))
            o.append((f"buffer_load_dwordx4 v{LWQV}, {s(SRD_WQ,4)}, s{S_T0} offen{cfg.w_pol} lds", tag))
        return o

    for pi in range(8):
        e.I("s_barrier")
        for qt in range(3):
            e.I(f"s_add_u32 s{S_T1}, s{S_XOFF}, {qt*32*1024}")
            for s4 in range(4):
                ks = 4 * pi + s4
                vm_guard()
                e.I(f"buffer_load_dwordx4 {xreg(ks*3+qt)}, v{LXV}, {s(SRD_X,4)}, s{S_T1} offen offset:{ks*32}{cfg.x_pol}", tag="X")
        if pi >= 5:
            emit_ops(wq_ops(pi - 5, pi - 5, S_QCOL, ("W", pi - 5)))
    e.wait_vm_tag("X")

    e.label("L_lloop")
    e.vm_out = [("st", 1)] * 24 + [("st", 2)] * 24
    for pos in range(8):
        e.comment(f"loader step pos {pos}")
        e.I("s_barrier")
        tag = ("st", pos + 3)
        dma = wq_ops((pos + 3) % 4, (pos + 3) % 8, S_QCOL if pos + 3 < 8 else S_QCOLN, tag) + kv_ops((pos + 3) % 4, tag)
        groups, cur = [], []
        for t in dma:
            cur.append(t)
            if t[0].startswith("buffer"):
                groups.append(cur); cur = []
        groups[-1] += cur
        slot = pos % 4

        def rd(fi):
            s4, t = fi >> 1, fi & 1
            fr = LF + 4 * (fi % 4)
            off = slot * 16384 + s4 * 2048
            e.I(f"ds_read_b64_tr_b16 {v(fr,2)}, v{LWQA+t} offset:{off}")
            e.I(f"ds_read_b64_tr_b16 {v(fr+2,2)}, v{LWQA+t} offset:{off+512}")
        for fi in range(3):
            rd(fi)
        gi = 0
        for _ in range(3):
            emit_ops(groups[gi]); gi += 1
        for fi in range(8):
            s4, t = fi >> 1, fi & 1
            ks = 4 * pos + s4
            fr = LF + 4 * (fi % 4)
            for qt in range(3):
                acc = LACC + 16 * (t * 3 + qt)
                c = "0" if ks == 0 else v(acc, 16)
                e.I(f"{MFMA} {v(acc,16)}, {v(fr,4)}, {xreg(ks*3+qt)}, {c}")
                if qt == 0 and fi + 3 < 8:
                    rd(fi + 3)
                if gi < 24:
                    emit_ops(groups[gi]); gi += 1
        assert gi == 24
        if pos == 7:
            for t in range(2):
                for qt in range(3):
                    acc = LACC + 16 * (t * 3 + qt)
                    for k in range(8):
                        e.I(f"v_cvt_pk_bf16_f32 v{acc+k}, v{acc+2*k}, v{acc+2*k+1}")
            e.I(f"v_add_u32 v{LT}, s{S_QW}, v{LQW}")
            for t in range(2):
                for qt in range(3):
                    acc = LACC + 16 * (t * 3 + qt)
                    for u in range(2):
                        e.I(f"ds_write_b128 v{LT}, {v(acc+4*u,4)} offset:{qt*8192 + (2*t+u)*1024}")
            e.I(f"s_xor_b32 s{S_QW}, s{S_QW}, 4096")
            e.I(f"s_mov_b32 s{S_QCOL}, s{S_QCOLN}")
            e.I(f"s_add_u32 s{S_QCOLN}, s{S_QCOLN}, 128")
            e.I(f"s_add_u32 s{S_TAU}, s{S_TAU}, 8")
            e.I(f"s_cmp_lt_u32 s{S_TAU}, 48")
        e.wait_vm_tag(("st", pos + 1), "lgkmcnt(0)")
    assert e.vm_out == [("st", 9)] * 24 + [("st", 10)] * 24, e.vm_out
    e.flush()
    e.I("s_cbranch_scc1 L_lloop")

    e.vm_out = [("st", 49)] * 24 + [("st", 50)] * 24
    plan = wo3_plan()
    e.I(f"s_add_u32 s{S_WO}, s{S_WOB}, {3*131072}")

    def wo3_ops(c):
        addr, _ = plan[c]
        o = []
        for pp in range(8):
            o.append((f"s_mov_b32 m0, {addr + pp*1024}", None))
            o.append((f"s_add_u32 s{S_T0}, s{S_WO}, {(c>>1)*16384 + (c&1)*512 + pp*2048}", None))
            o.append((f"buffer_load_dwordx4 v{LWOV+(pp&1)}, {s(SRD_WO,4)}, s{S_T0} offen{cfg.w_pol} lds", ("wo3", c & 1)))
        return o
    for tau in range(48, 65):
        e.comment(f"loader tau {tau}")
        e.I("s_barrier")
        st = tau + 3
        if st <= 63:
            emit_ops(kv_ops(st % 4, ("st", st)))
        elif st == 64:
            emit_ops(kv_ops(st % 4, ("st", st), k=False))
        for c in range(16):
            if plan[c][1] == tau:
                emit_ops(wo3_ops(c))
        if tau < 64:
            e.wait_vm_tag(("st", tau + 1))
        if tau == 63:
            e.wait_vm_tag(("wo3", 0))
    e.I("s_waitcnt vmcnt(0)")
    e.I("s_barrier")
    e.raw("L_done:")
    e.I("s_endpgm")


def reduce_kernel(e, cfg):
    e.raw(".p2align 8")
    e.raw(".globl red_kernel")
    e.raw(".type red_kernel,@function")
    e.raw("red_kernel:")
    e.I("s_cmp_ge_u32 s2, 768")
    e.I("s_cbranch_scc1 L_rdone")
    e.I("s_load_dwordx2 s[4:5], s[0:1], 96")
    e.I("s_load_dwordx2 s[8:9], s[0:1], 80")
    e.I("v_lshrrev_b32 v1, 6, v0")
    e.I("v_and_b32 v2, 63, v0")
    e.I("v_readfirstlane_b32 s12, v1")
    e.I("s_lshl_b32 s13, s2, 2")
    e.I("s_add_u32 s13, s13, s12")
    e.I("s_mul_i32 s14, s13, 43691")
    e.I("s_lshr_b32 s14, s14, 22")
    e.I("s_mul_i32 s15, s14, 96")
    e.I("s_sub_u32 s15, s13, s15")
    e.I("s_mul_i32 s16, s14, 768")
    e.I("s_add_u32 s16, s16, s15")
    e.I("s_lshl_b32 s16, s16, 10")
    e.I("v_lshlrev_b32 v3, 4, v2")
    e.I("s_waitcnt lgkmcnt(0)")
    e.I(f"s_mov_b32 s6, 0x{256*96*1024:x}")
    e.I("s_mov_b32 s7, 0x20000")
    e.I(f"s_mov_b32 s10, 0x{16*96*1024*2:x}")
    e.I("s_mov_b32 s11, 0x20000")
    for hg in range(8):
        e.I(f"buffer_load_dwordx4 {v(8+4*hg,4)}, v3, s[4:7], s16 offen{cfg.red_ld_pol}")
        if hg < 7:
            e.I(f"s_add_u32 s16, s16, {96*1024}")
    e.I("s_and_b32 s17, s14, 15")
    e.I("s_lshr_b32 s18, s14, 4")
    e.I("s_lshr_b32 s19, s15, 5")
    e.I("s_and_b32 s20, s15, 31")
    e.I("s_mul_i32 s17, s17, 96")
    e.I("s_lshl_b32 s19, s19, 5")
    e.I("s_add_u32 s17, s17, s19")
    e.I("s_lshl_b32 s17, s17, 11")
    e.I("s_lshl_b32 s18, s18, 10")
    e.I("s_add_u32 s17, s17, s18")
    e.I("s_lshl_b32 s20, s20, 5")
    e.I("s_add_u32 s17, s17, s20")
    e.I("v_and_b32 v4, 31, v2")
    e.I("v_lshlrev_b32 v4, 11, v4")
    e.I("v_lshrrev_b32 v5, 5, v2")
    e.I("v_lshl_add_u32 v4, v5, 4, v4")
    e.I("s_mov_b32 s21, 0xffff0000")
    for hg in range(8):
        e.I(f"s_waitcnt vmcnt({7-hg})")
        for k in range(4):
            src = 8 + 4 * hg + k
            if hg == 0:
                e.I(f"v_lshlrev_b32 v{40+2*k}, 16, v{src}")
                e.I(f"v_and_b32 v{41+2*k}, s21, v{src}")
            else:
                e.I(f"v_lshlrev_b32 v48, 16, v{src}")
                e.I(f"v_and_b32 v49, s21, v{src}")
                e.I(f"v_add_f32 v{40+2*k}, v{40+2*k}, v48")
                e.I(f"v_add_f32 v{41+2*k}, v{41+2*k}, v49")
    for k in range(4):
        e.I(f"v_cvt_pk_bf16_f32 v{52+k}, v{40+2*k}, v{41+2*k}")
    e.I("buffer_store_dwordx4 v[52:55], v4, s[8:11], s17 offen")
    e.raw("L_rdone:")
    e.I("s_endpgm")


HEADER = open("cdna_kernels/" + NAME + ".s.ref").read().split("; Override launch")[0]


def build(cfg, fname):
    e = Emit()
    e.raw(HEADER.rstrip("\n"))
    e.raw(f"; @launch kernel={NAME}_kernel grid=(256,1,1) block=(256,1,1) lds={LDS_BYTES}")
    e.raw("; @launch kernel=red_kernel grid=(768,1,1) block=(256,1,1) lds=0")
    e.raw('.amdgcn_target "amdgcn-amd-amdhsa--gfx950"')
    e.raw(".text")
    e.raw(f".globl {NAME}_kernel")
    e.raw(".p2align 8")
    e.raw(f".type {NAME}_kernel,@function")
    e.raw(f"{NAME}_kernel:")
    prologue_common(e, cfg)
    compute_wave(e, cfg)
    loader_wave(e, cfg)
    e2 = Emit()
    reduce_kernel(e2, cfg)
    e.lines += e2.lines
    e.raw('.section .rodata,"a"')
    for nm, nv, acc in ((NAME + "_kernel", 512, 256), ("red_kernel", 64, 64)):
        e.raw(".p2align 6")
        e.raw(f".amdhsa_kernel {nm}")
        e.raw(f"  .amdhsa_next_free_vgpr {nv}")
        e.raw("  .amdhsa_next_free_sgpr 102")
        e.raw(f"  .amdhsa_accum_offset {acc}")
        e.raw("  .amdhsa_group_segment_fixed_size 0")
        e.raw("  .amdhsa_kernarg_size 104")
        e.raw("  .amdhsa_user_sgpr_count 2")
        e.raw("  .amdhsa_user_sgpr_kernarg_segment_ptr 1")
        e.raw("  .amdhsa_system_sgpr_workgroup_id_x 1")
        e.raw(".end_amdhsa_kernel")
    open(fname, "w").write(e.text())
    print(f"{fname}: {e.ninstr} instrs, {e.nnop} nop states")


if __name__ == "__main__":
    cfg = Cfg()
    build(cfg, sys.argv[1] if len(sys.argv) > 1 else "k1.s")
```

```python
import re

TRANS = ("v_exp_f32", "v_log_f32", "v_rcp_f32", "v_rsq_f32", "v_sqrt_f32", "v_sin_f32", "v_cos_f32")


def v(i, n=1):
    return f"v{i}" if n == 1 else f"v[{i}:{i+n-1}]"


def a(i, n=1):
    return f"a{i}" if n == 1 else f"a[{i}:{i+n-1}]"


def s(i, n=1):
    return f"s{i}" if n == 1 else f"s[{i}:{i+n-1}]"


_reg_re = re.compile(r"^-?(?:abs\()?([vas])(?:(\d+)|\[(\d+):(\d+)\])\)?$")


def regs_of(tok):
    tok = tok.strip()
    if tok in ("vcc", "exec", "m0", "scc"):
        return [tok]
    if tok in ("vcc_lo", "vcc_hi"):
        return ["vcc"]
    m = _reg_re.match(tok)
    if not m:
        return []
    f = m.group(1)
    if m.group(2) is not None:
        return [(f, int(m.group(2)))]
    return [(f, i) for i in range(int(m.group(3)), int(m.group(4)) + 1)]


class Emit:
    def __init__(self):
        self.lines = []
        self.idx = 0
        self.valu_w = {}
        self.trans_w = {}
        self.mfma_w = {}
        self.mfma_c = {}
        self.valu_sw = {}
        self.store_d = {}
        self.m0_w = -100
        self.ds_out = []
        self.vm_out = []
        self.ninstr = 0
        self.nnop = 0

    def raw(self, text):
        self.lines.append(text)

    def comment(self, text):
        self.lines.append("  ; " + text)

    def _nop(self, n):
        while n > 0:
            k = min(n, 16)
            self.lines.append(f"  s_nop {k-1}")
            self.idx += k
            self.nnop += k
            n -= k

    def label(self, name, clean=True):
        if clean:
            self.flush()
        self.lines.append(f"{name}:")

    def flush(self, lgkm=True):
        need = 0
        for d, dist in ((self.valu_w, 2), (self.trans_w, 1), (self.mfma_c, 7), (self.valu_sw, 5), (self.store_d, 2)):
            for r, i in d.items():
                need = max(need, dist - (self.idx - i - 1))
        for r, (i, rng) in self.mfma_w.items():
            need = max(need, 12 - (self.idx - i - 1))
        need = max(need, 1 - (self.idx - self.m0_w - 1))
        if lgkm and self.ds_out:
            self.I("s_waitcnt lgkmcnt(0)")
            need -= 1
        if need > 0:
            self._nop(need)
        self.valu_w.clear(); self.trans_w.clear(); self.mfma_w.clear(); self.mfma_c.clear()
        self.valu_sw.clear(); self.store_d.clear()

    def snapshot(self):
        return dict(idx=self.idx, valu_w=dict(self.valu_w), trans_w=dict(self.trans_w), mfma_w=dict(self.mfma_w),
                    mfma_c=dict(self.mfma_c), valu_sw=dict(self.valu_sw), store_d=dict(self.store_d), m0_w=self.m0_w,
                    ds=[set(x) for x in self.ds_out], vm=list(self.vm_out))

    def join(self, name, snap):
        a_, b_ = self.ds_out, snap["ds"]
        lo, hi = (a_, b_) if len(a_) <= len(b_) else (b_, a_)
        assert len(lo) == 0 or hi[len(hi) - len(lo):] == lo, "DS state mismatch at join"
        self.ds_out = [set(x) for x in hi]
        shift = self.idx - snap["idx"]
        for key in ("valu_w", "trans_w", "mfma_c", "valu_sw", "store_d"):
            cur = getattr(self, key)
            for r, i in snap[key].items():
                cur[r] = max(cur.get(r, -1000), i + shift)
        for r, (i, rng) in snap["mfma_w"].items():
            c = self.mfma_w.get(r)
            if c is None or c[0] < i + shift:
                if c is not None and c[1] != rng:
                    self.mfma_w[r] = (i + shift, (-1, -1))
                else:
                    self.mfma_w[r] = (i + shift, rng)
            elif c[1] != rng:
                self.mfma_w[r] = (c[0], (-1, -1))
        self.m0_w = max(self.m0_w, snap["m0_w"] + shift)
        if name:
            self.lines.append(f"{name}:")

    def restore(self, snap):
        self.valu_w.clear(); self.trans_w.clear(); self.mfma_w.clear(); self.mfma_c.clear()
        self.valu_sw.clear(); self.store_d.clear(); self.m0_w = -100
        self.ds_out = []
        self.join(None, snap)

    def loop(self, name, body, branch):
        import copy
        entry = self.snapshot()
        end = None
        for it in range(4):
            t = copy.deepcopy(self)
            if end is not None:
                t.join(None, end)
            n0 = len(t.lines)
            t.lines.append(f"{name}:")
            body(t)
            t.I(branch)
            new_end = t.snapshot()
            txt = t.lines[n0:]
            if end is not None and txt == prev_txt:
                break
            prev_txt = txt
            end = new_end
        else:
            raise RuntimeError("loop state did not converge")
        assert new_end["ds"] == end["ds"]
        self.__dict__.update(t.__dict__)

    def wait_ds_for(self, regs):
        touched = set(regs)
        k = -1
        for i, dst in enumerate(self.ds_out):
            if dst & touched:
                k = i
        if k >= 0:
            n = len(self.ds_out) - k - 1
            self.I(f"s_waitcnt lgkmcnt({min(n,15)})")

    def I(self, text, tag=None):
        text = text.strip()
        mn, _, rest = text.partition(" ")
        ops_part = rest.strip()
        toks = [t.strip() for t in ops_part.split(",")] if ops_part else []
        mods = []
        if toks:
            last = toks[-1].split()
            toks[-1] = last[0] if last else ""
            mods = last[1:]
        reads, writes = [], []
        kind = "salu"
        if mn.startswith("v_mfma"):
            kind = "mfma"
            D, A_, B_, C_ = [regs_of(t) for t in toks[:4]]
            writes = D
            reads = A_ + B_ + C_
        elif mn.startswith("ds_read"):
            kind = "ds"
            writes = regs_of(toks[0]); reads = regs_of(toks[1])
        elif mn.startswith("ds_write"):
            kind = "ds"
            reads = sum((regs_of(t) for t in toks), [])
        elif mn.startswith("buffer_load") or mn.startswith("global_load"):
            kind = "vm"
            if "lds" in mods:
                reads = sum((regs_of(t) for t in toks), []) + ["m0"]
            else:
                writes = regs_of(toks[0]); reads = sum((regs_of(t) for t in toks[1:]), [])
        elif mn.startswith("buffer_store") or mn.startswith("global_store") or mn.startswith("buffer_atomic") or mn.startswith("global_atomic"):
            kind = "vm"
            reads = sum((regs_of(t) for t in toks), [])
            if "atomic" in mn and "sc0" in mods:
                writes = regs_of(toks[0])
        elif mn.startswith("buffer_wbl2") or mn.startswith("buffer_inv"):
            kind = "vm"
        elif mn.startswith("v_"):
            kind = "valu"
            if mn.startswith("v_permlane32_swap") or mn.startswith("v_permlane16_swap"):
                writes = regs_of(toks[0]) + regs_of(toks[1]); reads = list(writes)
            elif mn.startswith("v_nop"):
                pass
            else:
                writes = regs_of(toks[0])
                reads = sum((regs_of(t) for t in toks[1:]), [])
                if mn.startswith("v_fmac") or mn.startswith("v_writelane"):
                    reads += writes
                if "_co_" in mn:
                    writes = writes + regs_of(toks[1])
                    reads = sum((regs_of(t) for t in toks[2:]), [])
                if mn.startswith("v_cndmask") and len(toks) == 3:
                    reads.append("vcc")
        else:
            if mn in ("s_waitcnt", "s_barrier", "s_nop", "s_endpgm", "s_branch", "s_setprio", "s_sleep") or mn.startswith("s_cbranch"):
                pass
            elif mn.startswith("s_cmp"):
                reads = sum((regs_of(t) for t in toks), [])
            elif mn.startswith("s_load") or mn.startswith("s_memtime") or mn.startswith("s_memrealtime"):
                writes = regs_of(toks[0]); reads = sum((regs_of(t) for t in toks[1:]), [])
            else:
                writes = regs_of(toks[0]) if toks else []
                reads = sum((regs_of(t) for t in toks[1:]), [])

        if mn == "s_waitcnt":
            m = re.search(r"lgkmcnt\((\d+)\)", text)
            if m:
                n = int(m.group(1))
                while len(self.ds_out) > n:
                    self.ds_out.pop(0)
            m = re.search(r"vmcnt\((\d+)\)", text)
            if m:
                n = int(m.group(1))
                while len(self.vm_out) > n:
                    self.vm_out.pop(0)
        else:
            touched = set(reads) | set(writes)
            k = -1
            for i, dst in enumerate(self.ds_out):
                if dst & touched:
                    k = i
            if k >= 0:
                n = len(self.ds_out) - k - 1
                self.I(f"s_waitcnt lgkmcnt({min(n,15)})")
            if kind == "ds" and len(self.ds_out) >= 15:
                self.I("s_waitcnt lgkmcnt(14)")

        need = 0

        def req(i, dist):
            nonlocal need
            need = max(need, dist - (self.idx - i - 1))

        if kind == "mfma":
            for r in reads:
                if r in self.valu_w: req(self.valu_w[r], 2)
            for r in A_ + B_:
                if r in self.mfma_w: req(self.mfma_w[r][0], 12)
            crng = (C_[0], len(C_)) if C_ else None
            for r in C_:
                if r in self.mfma_w:
                    i, rng = self.mfma_w[r]
                    if rng != crng:
                        req(i, 10)
            if not C_ or C_ != D:
                for r in D:
                    if r in self.mfma_w and not (C_ and r in C_):
                        req(self.mfma_w[r][0], 12) if self.mfma_w[r][1] != (D[0], len(D)) else None
        elif kind == "valu":
            for r in set(reads) | set(writes):
                if r in self.mfma_w: req(self.mfma_w[r][0], 12)
            for r in writes:
                if r in self.mfma_c: req(self.mfma_c[r], 7)
                if r in self.store_d: req(self.store_d[r], 2)
            for r in reads:
                if r in self.trans_w: req(self.trans_w[r], 1)
                if r in self.valu_sw: req(self.valu_sw[r], 2)
            if mn.startswith("v_permlane"):
                for r in reads:
                    if r in self.valu_w: req(self.valu_w[r], 2)
            if mn.startswith("v_readfirstlane") or mn.startswith("v_readlane"):
                for r in reads:
                    if r in self.valu_w: req(self.valu_w[r], 1)
        elif kind in ("ds", "vm"):
            for r in set(reads) | set(writes):
                if r in self.mfma_w: req(self.mfma_w[r][0], 12)
            for r in writes:
                if r in self.mfma_c: req(self.mfma_c[r], 7)
                if r in self.store_d: req(self.store_d[r], 2)
            for r in reads:
                if r in self.valu_sw: req(self.valu_sw[r], 5)
                if r in self.trans_w: req(self.trans_w[r], 1)
            if "m0" in reads:
                req(self.m0_w, 1)
        else:
            for r in reads:
                if r in self.valu_sw: req(self.valu_sw[r], 3)
            if mn.startswith("s_cbranch_vcc") and "vcc" in self.valu_sw:
                req(self.valu_sw["vcc"], 1)
        if need > 0:
            self._nop(need)

        self.lines.append("  " + text)
        self.ninstr += 1
        i = self.idx
        if mn == "s_nop":
            self.idx += int(toks[0], 0) + 1
        else:
            self.idx += 1
        if kind == "mfma":
            for r in D:
                self.mfma_w[r] = (i, (D[0], len(D)))
                self.valu_w.pop(r, None); self.trans_w.pop(r, None)
            for r in C_:
                self.mfma_c[r] = i
        elif kind == "valu":
            for r in writes:
                if isinstance(r, tuple) and r[0] in "va":
                    self.valu_w[r] = i
                    self.mfma_w.pop(r, None)
                    if mn.split("_e")[0] in TRANS or mn in TRANS:
                        self.trans_w[r] = i
                    else:
                        self.trans_w.pop(r, None)
                else:
                    self.valu_sw[r] = i
        elif kind == "ds":
            self.ds_out.append(set(writes))
            for r in writes:
                self.mfma_w.pop(r, None); self.valu_w.pop(r, None); self.trans_w.pop(r, None)
        elif kind == "vm":
            self.vm_out.append(tag)
            for r in writes:
                self.mfma_w.pop(r, None); self.valu_w.pop(r, None); self.trans_w.pop(r, None)
            if ("store" in mn or "atomic" in mn) and ("x4" in mn or "x3" in mn):
                for r in regs_of(toks[0] if mn.startswith("buffer") else toks[1]):
                    self.store_d[r] = i
        else:
            if "m0" in writes:
                self.m0_w = i
            for r in writes:
                self.valu_sw.pop(r, None)

    def wait_vm_tag(self, tag, extra=""):
        k = -1
        for i, t in enumerate(self.vm_out):
            if t == tag:
                k = i
        if k < 0:
            if extra:
                self.I(f"s_waitcnt {extra}")
            return
        n = len(self.vm_out) - k - 1
        assert n <= 63
        self.I(f"s_waitcnt vmcnt({n}) {extra}")

    def text(self):
        return "\n".join(self.lines) + "\n"
```

```python
import sys, struct, math
from emit import Emit, v, a, s, regs_of

NAME = "concat_heads__gqa_block_cached__gqa_block_cached__near_ridge"
MFMA = "v_mfma_f32_32x32x16_bf16"

KV_BASE = 0
W_BASE = 65536
WQ_SUB, WO_SUB = 0, 8192
Q_BASE = 131072
X_BASE = 122880
LDS_BYTES = 159744

SRD_K, SRD_V, SRD_WQ, SRD_WO, SRD_X, SRD_WS, SRD_OUT, SRD_DBG = 8, 12, 16, 20, 24, 28, 32, 4
S_HG, S_B, S_P, S_WAVE, S_TAU, S_C, S_D = 60, 61, 62, 63, 64, 65, 66
S_T0, S_T1, S_T2 = 67, 68, 69
S_WO = 70
S_WM = 71
S_PM = 74
S_PG = 80
S_KOFF, S_VOFF, S_QCOL, S_QCOLN = 86, 87, 88, 89
S_XOFF, S_XM = 90, 91
S_WSOFF = 92
S_WOB = 93
S_PB = 3
S_QW = 74
S_THR = 94
S_RET = 95
S_ST0, S_ST1 = 96, 98


def f32bits(x):
    return struct.unpack("<I", struct.pack("<f", x))[0]


class Cfg:
    kv_nt = " nt"
    w_pol = ""
    x_pol = ""
    st_pol = " sc1"
    red_ld_pol = " sc1"
    prof = False
    t2 = True
    thr = 65536.0


def stamp_issue(e, cfg, pair):
    if cfg.prof:
        e.raw(f"  s_memrealtime s[{pair}:{pair+1}]")
        e.idx += 1


def stamp_save(e, cfg, pair, vreg, lane):
    if not cfg.prof:
        return
    if isinstance(lane, tuple):
        e.raw(f"  s_add_u32 m0, s{S_TAU}, {lane[1]}\n  s_nop 0")
        e.raw(f"  v_writelane_b32 v{vreg}, s{pair}, m0")
        e.idx += 3
    else:
        e.raw(f"  v_writelane_b32 v{vreg}, s{pair}, {lane}")
        e.idx += 1


def stamp_now(e, cfg, vreg, lane):
    if cfg.prof:
        stamp_issue(e, cfg, S_ST0)
        e.I("s_waitcnt lgkmcnt(0)")
        stamp_save(e, cfg, S_ST0, vreg, lane)


def stamp_dump(e, cfg, regs, tmp):
    if not cfg.prof:
        return
    e.I(f"s_lshl_b32 s{S_T0}, s2, 12")
    e.I(f"s_lshl_b32 s{S_T1}, s{S_WAVE}, 10")
    e.I(f"s_add_u32 s{S_T0}, s{S_T0}, s{S_T1}")
    e.I(f"s_add_u32 s{S_T0}, s{S_T0}, 0x2000000")
    e.I(f"v_mbcnt_lo_u32_b32 v{tmp}, -1, 0")
    e.I(f"v_mbcnt_hi_u32_b32 v{tmp}, -1, v{tmp}")
    e.I(f"v_lshlrev_b32 v{tmp}, 2, v{tmp}")
    for k, r in enumerate(regs):
        e.I(f"buffer_store_dword v{r}, v{tmp}, {s(SRD_WS,4)}, s{S_T0} offen offset:{k*256}")


LANE0 = 127


def prologue_common(e, cfg):
    e.I("s_cmp_ge_u32 s2, 256")
    e.I("s_cbranch_scc1 L_done")
    if cfg.prof:
        e.raw("  s_memrealtime s[100:101]")
    e.I("s_load_dwordx16 s[36:51], s[0:1], 0")
    e.I("s_load_dwordx8 s[52:59], s[0:1], 64")
    e.I(f"s_load_dwordx2 s[{SRD_WS}:{SRD_WS+1}], s[0:1], 96")
    e.I(f"s_and_b32 s{S_HG}, s2, 7")
    e.I(f"s_lshr_b32 s{S_PB}, s2, 3")
    e.I(f"s_and_b32 s{S_B}, s{S_PB}, 15")
    e.I(f"s_lshr_b32 s{S_P}, s{S_PB}, 4")
    e.I("v_lshrrev_b32 v1, 6, v0")
    e.I(f"v_and_b32 v{LANE0}, 63, v0")
    e.I(f"v_readfirstlane_b32 s{S_WAVE}, v1")
    e.I(f"s_mov_b32 s{S_C}, 0x{f32bits(128 ** -0.5 * math.log2(math.e)):08x}")
    e.I(f"s_lshl_b32 s{S_WOB}, s{S_HG}, 19")
    e.I(f"s_mov_b32 s{S_TAU}, 0")
    e.I(f"s_mov_b32 s{SRD_WS+2}, 0x{(64<<20) if cfg.prof else 256*96*1024:x}")
    e.I(f"s_mov_b32 s{SRD_WS+3}, 0x20000")
    e.I(f"s_cmp_eq_u32 s{S_P}, 0")
    e.I("s_waitcnt lgkmcnt(0)")
    for srd, pa, pb, size in ((SRD_K, 38, 48, 1 << 26), (SRD_V, 40, 50, 1 << 26), (SRD_WQ, 42, 52, 1 << 22),
                              (SRD_X, 36, 46, 16 * 96 * 512 * 2), (SRD_WO, 44, 54, 1 << 22)):
        e.I(f"s_cselect_b32 s{srd}, s{pa}, s{pb}")
        e.I(f"s_cselect_b32 s{srd+1}, s{pa+1}, s{pb+1}")
        e.I(f"s_mov_b32 s{srd+2}, 0x{size:x}")
        e.I(f"s_mov_b32 s{srd+3}, 0x20000")
    e.I(f"s_mov_b32 s{SRD_OUT}, s56")
    e.I(f"s_mov_b32 s{SRD_OUT+1}, s57")
    e.I(f"s_mov_b32 s{SRD_OUT+2}, 0x{16*96*1024*2:x}")
    e.I(f"s_mov_b32 s{SRD_OUT+3}, 0x20000")
    e.I(f"s_mov_b32 s{SRD_DBG}, s58")
    e.I(f"s_mov_b32 s{SRD_DBG+1}, s59")
    e.I(f"s_mov_b32 s{SRD_DBG+2}, 256")
    e.I(f"s_mov_b32 s{SRD_DBG+3}, 0x20000")
    e.I(f"s_cmp_eq_u32 s{S_WAVE}, 3")
    e.I("s_cbranch_scc1 L_loader")


def pat_tr(e, dst, L, t0, hi_sh, r_sh, swz_sh, perm, base):
    e.I(f"v_lshrrev_b32 v{dst}, 5, v{L}")
    e.I(f"v_lshlrev_b32 v{dst}, {hi_sh}, v{dst}")
    e.I(f"v_bfe_u32 v{t0}, v{L}, 2, 2")
    e.I(f"v_lshl_add_u32 v{dst}, v{t0}, {r_sh}, v{dst}")
    e.I(f"v_lshrrev_b32 v{t0}, {swz_sh}, v{t0}")
    e.I(f"v_lshl_add_u32 v{dst}, v{t0}, 6, v{dst}")
    e.I(f"v_bfe_u32 v{t0}, v{L}, 4, 1")
    e.I(f"v_lshl_add_u32 v{dst}, v{t0}, 5, v{dst}")
    if perm:
        e.I(f"v_and_b32 v{t0}, 1, v{L}")
        e.I(f"v_lshl_add_u32 v{dst}, v{t0}, 4, v{dst}")
        e.I(f"v_bfe_u32 v{t0}, v{L}, 1, 1")
        e.I(f"v_lshl_add_u32 v{dst}, v{t0}, 3, v{dst}")
    else:
        e.I(f"v_and_b32 v{t0}, 3, v{L}")
        e.I(f"v_lshl_add_u32 v{dst}, v{t0}, 3, v{dst}")
    if base:
        e.I(f"v_add_u32 v{dst}, 0x{base:x}, v{dst}")


def pat_wqv(e, dst, L, t0, t1):
    e.I(f"v_bfe_u32 v{t0}, v{L}, 4, 1")
    e.I(f"v_lshlrev_b32 v{t0}, 2, v{t0}")
    e.I(f"v_and_b32 v{t1}, 7, v{L}")
    e.I(f"v_xor_b32 v{t0}, v{t0}, v{t1}")
    e.I(f"v_lshlrev_b32 v{t0}, 4, v{t0}")
    e.I(f"v_lshrrev_b32 v{t1}, 3, v{L}")
    e.I(f"v_lshl_add_u32 v{dst}, v{t1}, 13, v{t0}")


def pat_wov(e, dst, L, t0, t1):
    e.I(f"v_lshrrev_b32 v{t0}, 5, v{L}")
    e.I(f"v_lshlrev_b32 v{t1}, 2, v{t0}")
    e.I(f"v_and_b32 v{dst}, 31, v{L}")
    e.I(f"v_xor_b32 v{dst}, v{dst}, v{t1}")
    e.I(f"v_lshlrev_b32 v{dst}, 4, v{dst}")
    e.I(f"v_lshl_add_u32 v{dst}, v{t0}, 10, v{dst}")


def pat_xa(e, dst, L, t0, t1, base_sgpr_or_imm):
    e.I(f"v_bfe_u32 v{t0}, v{L}, 1, 3")
    e.I(f"v_lshrrev_b32 v{t1}, 5, v{L}")
    e.I(f"v_xor_b32 v{t0}, v{t0}, v{t1}")
    e.I(f"v_lshlrev_b32 v{t0}, 4, v{t0}")
    e.I(f"v_and_b32 v{t1}, 31, v{L}")
    e.I(f"v_lshl_add_u32 v{dst}, v{t1}, 7, v{t0}")
    e.I(f"v_add_u32 v{dst}, {base_sgpr_or_imm}, v{dst}")
    for k in range(1, 4):
        e.I(f"v_xor_b32 v{dst+k}, {32*k}, v{dst}")


def spread(ops, slots):
    d = {}
    n = len(slots)
    for k, sl in enumerate(slots):
        lo = len(ops) * k // n
        hi = len(ops) * (k + 1) // n
        d.setdefault(sl, []).extend(ops[lo:hi])
    return d


def merge(*ds):
    r = {}
    for d in ds:
        for k, x in d.items():
            r.setdefault(k, []).extend(x)
    return r


O_ACC, QF, OF, SR, NEGM, P0, FST, ER = 0, 64, 96, 136, 152, 168, 184, 216
NF = 8
LEAD = 7
KA, VA, WA, QA, WOV = 220, 228, 232, 236, 237
L_, SUM0, SUM1, T0, T1, ALPHA, STV = 240, 241, 242, 243, 244, 245, 246
TA, TB, TC, TX = 249, 250, 251, 252
XF = SR
WQA, WQV, XVP, XA = NEGM, NEGM + 2, NEGM + 3, NEGM + 5


def fr_of(k):
    return FST + 4 * (k % NF)


def issue_reads(e, item, k):
    for t in item[0](fr_of(k)):
        e.I(t)


def emit_step(e, items, nxt, at_bar, fill, first=False):
    n = len(items)
    assert n % NF == 0
    if first:
        for k in range(LEAD):
            issue_reads(e, items[k], k)
    for t in fill.get(-1, []):
        e.I(t)
    for i in range(n):
        if i % 2 == 0 and i + 1 < n:
            e.wait_ds_for(regs_of(v(fr_of(i + 1), 4)))
        e.I(items[i][1](fr_of(i)))
        if i + LEAD < n:
            issue_reads(e, items[i + LEAD], i + LEAD)
        if nxt is not None:
            if i == n - 5:
                at_bar()
                for k in range(4):
                    issue_reads(e, nxt[k], k)
            elif n - 4 <= i <= n - 2:
                k = i - (n - 4) + 4
                issue_reads(e, nxt[k], k)
        for t in fill.get(i, []):
            e.I(t)


def tr2(addr, off, estep):
    return lambda fr: [f"ds_read_b64_tr_b16 {v(fr,2)}, v{addr} offset:{off}",
                       f"ds_read_b64_tr_b16 {v(fr+2,2)}, v{addr} offset:{off+estep}"]


def items_S(slot):
    it = []
    for ks in range(8):
        rd = (lambda ks: lambda fr: [f"ds_read_b128 {v(fr,4)}, v{KA+ks} offset:{KV_BASE + slot*16384}"])(ks)
        mf = (lambda ks: lambda fr: f"{MFMA} {v(SR,16)}, {v(fr,4)}, {v(QF+4*ks,4)}, " + (v(NEGM, 16) if ks == 0 else v(SR, 16)))(ks)
        it.append((rd, mf))
    return it


def items_PV(slot, pbuf):
    it = []
    for ks in range(2):
        for dt in range(4):
            rd = tr2(VA + dt, KV_BASE + slot * 16384 + 8192 + ks * 4096, 2048)
            mf = (lambda ks, dt: lambda fr: f"{MFMA} {v(O_ACC+16*dt,16)}, {v(fr,4)}, {v(P0+8*pbuf+4*ks,4)}, {v(O_ACC+16*dt,16)}")(ks, dt)
            it.append((rd, mf))
    return it


def items_OP(slot, nh, ofr):
    it = []
    for n8 in range(8):
        nt = nh * 8 + n8
        rd = tr2(WA + (n8 & 3), slot * 16384 + WO_SUB + (n8 >> 2) * 256, 4096)
        mf = (lambda nt: lambda fr: f"{MFMA} {a(16*nt,16)}, {v(fr,4)}, {v(ofr,4)}, {a(16*nt,16)}")(nt)
        it.append((rd, mf))
    return it


def main_items(pos):
    c4 = (pos - 1) % 4
    return items_S(pos) + items_PV(pos, (pos - 1) % 2) + items_OP(pos, c4 & 1, OF + 4 * (c4 >> 1))


def exp_ops(pbuf, inplace=False):
    S = lambda i: f"v{SR+i}"
    E = (lambda i: f"v{SR+i}") if inplace else (lambda i: f"v{ER+(i%4)}")
    o = []

    def pair(j):
        r = []
        if j == 0:
            r.append(f"v_add_f32 v{SUM0}, {E(0)}, {E(1)}")
        elif j == 2:
            r.append(f"v_add_f32 v{SUM1}, {E(2)}, {E(3)}")
        else:
            r.append(f"v_add_f32 v{SUM0}, v{SUM0}, {E(j)}")
            r.append(f"v_add_f32 v{SUM1}, v{SUM1}, {E(j+1)}")
        r.append(f"v_cvt_pk_bf16_f32 v{P0+8*pbuf+j//2}, {E(j)}, {E(j+1)}")
        return r
    o.append(f"v_exp_f32 {E(0)}, {S(0)}")
    o.append(f"v_exp_f32 {E(1)}, {S(1)}")
    for j in range(0, 16, 2):
        p = pair(j)
        if j + 2 < 16:
            o.append(f"v_exp_f32 {E(j+2)}, {S(j+2)}")
            o.append(p[0])
            o.append(f"v_exp_f32 {E(j+3)}, {S(j+3)}")
            o += p[1:]
        else:
            o += p
    o.append(f"v_add_f32 v{SUM0}, v{SUM0}, v{SUM1}")
    return o


def finalize_ops(dst):
    o = []
    o.append(f"v_mov_b32 v{T1}, v{L_}")
    o.append(f"v_mov_b32 v{T0}, v{L_}")
    o.append(f"v_permlane32_swap_b32 v{T0}, v{T1}")
    o.append(f"v_add_f32 v{T1}, v{T0}, v{T1}")
    o.append(f"v_rcp_f32 v{T1}, v{T1}")
    for k in range(32):
        o.append(f"v_mul_f32 v{O_ACC+2*k}, v{O_ACC+2*k}, v{T1}")
        o.append(f"v_mul_f32 v{O_ACC+2*k+1}, v{O_ACC+2*k+1}, v{T1}")
        o.append(f"v_cvt_pk_bf16_f32 v{dst+k}, v{O_ACC+2*k}, v{O_ACC+2*k+1}")
    return o


def rare_ops(pbuf):
    S = lambda i: f"v{SR+i}"
    o = []
    o.append(f"v_max3_f32 v{T0}, {S(0)}, {S(1)}, {S(2)}")
    o.append(f"v_max3_f32 v{T1}, {S(3)}, {S(4)}, {S(5)}")
    o.append(f"v_max3_f32 v{T0}, v{T0}, {S(6)}, {S(7)}")
    o.append(f"v_max3_f32 v{T1}, v{T1}, {S(8)}, {S(9)}")
    o.append(f"v_max3_f32 v{T0}, v{T0}, {S(10)}, {S(11)}")
    o.append(f"v_max3_f32 v{T1}, v{T1}, {S(12)}, {S(13)}")
    o.append(f"v_max3_f32 v{T0}, v{T0}, {S(14)}, {S(15)}")
    o.append(f"v_max3_f32 v{T0}, v{T0}, v{T1}, s{S_D}")
    o.append(f"v_mov_b32 v{T1}, v{T0}")
    o.append(f"v_permlane32_swap_b32 v{T0}, v{T1}")
    o.append(f"v_max_f32 v{T0}, v{T0}, v{T1}")
    o.append(f"v_sub_f32 v{T1}, s{S_D}, v{T0}")
    o.append(f"v_exp_f32 v{ALPHA}, v{T1}")
    for i in range(16):
        o.append(f"v_sub_f32 {S(i)}, {S(i)}, v{T0}")
    for i in range(16):
        o.append(f"v_sub_f32 v{NEGM+i}, v{NEGM+i}, v{T0}")
    o += exp_ops(pbuf, inplace=True)
    for i in range(64):
        o.append(f"v_mul_f32 v{O_ACC+i}, v{O_ACC+i}, v{ALPHA}")
    o.append(f"v_fma_f32 v{L_}, v{L_}, v{ALPHA}, v{SUM0}")
    o.append(f"s_mov_b32 s{S_D}, 0")
    return o


def wo3_plan():
    nh0 = [(W_BASE + 1 * 16384 + WO_SUB, None),
           (W_BASE + 0 * 16384 + WQ_SUB, 51), (W_BASE + 1 * 16384 + WQ_SUB, 52), (W_BASE + 2 * 16384 + WQ_SUB, 53),
           (W_BASE + 3 * 16384 + WQ_SUB, 54), (Q_BASE, 55), (Q_BASE + 8192, 56), (Q_BASE + 16384, 57)]
    nh1 = [(W_BASE + 2 * 16384 + WO_SUB, None), (KV_BASE + 0, 61),
           (KV_BASE + 16384, 62), (KV_BASE + 16384 + 8192, 62),
           (KV_BASE + 32768, 63), (KV_BASE + 32768 + 8192, 63),
           (KV_BASE + 49152, 64), (KV_BASE + 49152 + 8192, 64)]
    plan = {}
    for sidx in range(8):
        plan[2 * sidx] = nh0[sidx]
        plan[2 * sidx + 1] = nh1[sidx]
    return plan


def pslot(pi):
    return (pi + 1) % 3


def compute_wave(e, cfg):
    L = LANE0
    t0, t1, t2 = T0, T1, ALPHA
    stamp_now(e, cfg, TX, 22)
    stamp_save(e, cfg, 100, TX, 0)
    pat_wqv(e, WQV, L, t0, t1)
    e.I(f"v_lshrrev_b32 v{t0}, 4, v{L}")
    e.I(f"v_and_b32 v{t1}, 7, v{L}")
    e.I(f"v_xor_b32 v{t0}, v{t0}, v{t1}")
    e.I(f"v_lshlrev_b32 v{t0}, 4, v{t0}")
    e.I(f"v_lshrrev_b32 v{t1}, 3, v{L}")
    e.I(f"v_lshl_add_u32 v{XVP}, v{t1}, 10, v{t0}")
    e.I(f"v_xor_b32 v{XVP+1}, 64, v{XVP}")
    e.I(f"s_mul_i32 s{S_T2}, s{S_WAVE}, 6")
    e.I(f"s_lshl_b32 s{S_XM}, s{S_HG}, 10")
    for k in range(6):
        e.I(f"s_add_u32 s{S_T0}, s{S_T2}, {k}")
        e.I(f"s_min_u32 s{S_T0}, s{S_T0}, 15")
        e.I(f"s_lshl_b32 s{S_PM+k}, s{S_T0}, 10")
        e.I(f"s_and_b32 s{S_T1}, s{S_T0}, 7")
        e.I(f"s_lshl_b32 s{S_T1}, s{S_T1}, 16")
        e.I(f"s_lshr_b32 s{S_T0}, s{S_T0}, 3")
        e.I(f"s_lshl_b32 s{S_T0}, s{S_T0}, 7")
        e.I(f"s_add_u32 s{S_T1}, s{S_T1}, s{S_T0}")
        e.I(f"s_add_u32 s{S_PG+k}, s{S_T1}, s{S_XM}")
    e.I(f"s_mul_i32 s{S_XOFF}, s{S_B}, 96")
    e.I(f"s_lshl_b32 s{S_T0}, s{S_WAVE}, 5")
    e.I(f"s_add_u32 s{S_XOFF}, s{S_XOFF}, s{S_T0}")
    e.I(f"s_lshl_b32 s{S_XOFF}, s{S_XOFF}, 10")
    e.I(f"s_lshl_b32 s{S_XM}, s{S_WAVE}, 12")

    def issue_pstage(pi):
        for k in range(4):
            e.I(f"s_add_u32 m0, s{S_XM}, {X_BASE + pslot(pi) * 12288 + k * 1024}")
            e.I(f"s_add_u32 s{S_T0}, s{S_XOFF}, {pi * 128 + k * 8192}")
            e.I(f"buffer_load_dwordx4 v{XVP+(k&1)}, {s(SRD_X,4)}, s{S_T0} offen{cfg.x_pol} lds", tag=("P", pi))
        for k in range(6):
            e.I(f"s_add_u32 m0, s{S_PM+k}, {W_BASE + pslot(pi) * 16384}")
            e.I(f"s_add_u32 s{S_T0}, s{S_PG+k}, {pi * 524288}")
            e.I(f"buffer_load_dwordx4 v{WQV}, {s(SRD_WQ,4)}, s{S_T0} offen{cfg.w_pol} lds", tag=("P", pi))
    stamp_now(e, cfg, TX, 3)
    issue_pstage(0)
    issue_pstage(1)
    issue_pstage(2)
    stamp_now(e, cfg, TX, 6)
    pat_tr(e, WQA, L, t0, 10, 7, 1, True, W_BASE)
    e.I(f"v_xor_b32 v{WQA+1}, 64, v{WQA}")
    e.I(f"s_add_u32 s{S_T0}, s{S_XM}, {X_BASE}")
    pat_xa(e, XA, L, t0, t1, f"s{S_T0}")
    e.I(f"v_and_b32 v{t0}, 15, v{L}")
    e.I(f"v_lshrrev_b32 v{t1}, 5, v{L}")
    e.I(f"v_xor_b32 v{t0}, v{t0}, v{t1}")
    e.I(f"v_lshlrev_b32 v{t0}, 4, v{t0}")
    e.I(f"v_and_b32 v{t1}, 31, v{L}")
    e.I(f"v_lshl_add_u32 v{KA}, v{t1}, 8, v{t0}")
    for k in range(1, 8):
        e.I(f"v_xor_b32 v{KA+k}, {32*k}, v{KA}")
    pat_tr(e, VA, L, t0, 10, 8, 0, False, 0)
    for k in range(1, 4):
        e.I(f"v_xor_b32 v{VA+k}, {64*k}, v{VA}")
    pat_tr(e, WA, L, t0, 11, 9, 0, True, W_BASE)
    for k in range(1, 4):
        e.I(f"v_xor_b32 v{WA+k}, {64*k}, v{WA}")
    e.I(f"s_lshl_b32 s{S_T0}, s{S_WAVE}, 13")
    e.I(f"s_add_u32 s{S_T0}, s{S_T0}, 0x{Q_BASE:x}")
    e.I(f"v_lshlrev_b32 v{STV}, 4, v{L}")
    e.I(f"v_add_u32 v{QA}, s{S_T0}, v{STV}")
    pat_wov(e, t2, L, t0, t1)
    for k in range(3):
        e.I(f"s_mul_i32 s{S_T0}, s{S_WAVE}, 3")
        e.I(f"s_add_u32 s{S_T0}, s{S_T0}, {k}")
        e.I(f"s_min_u32 s{S_T0}, s{S_T0}, 7")
        e.I(f"s_lshl_b32 s{S_WM+k}, s{S_T0}, 10")
        e.I(f"s_and_b32 s{S_T1}, s{S_T0}, 1")
        e.I(f"s_lshl_b32 s{S_T1}, s{S_T1}, 7")
        e.I(f"s_lshl_b32 s{S_T0}, s{S_T0}, 11")
        e.I(f"v_xor_b32 v{WOV+k}, s{S_T1}, v{t2}")
        e.I(f"v_add_u32 v{WOV+k}, s{S_T0}, v{WOV+k}")
    e.I(f"s_sub_u32 s{S_WO}, s{S_WOB}, {7*16384}")
    e.I(f"s_mul_i32 s{S_WSOFF}, s2, 3")
    e.I(f"s_add_u32 s{S_WSOFF}, s{S_WSOFF}, s{S_WAVE}")
    e.I(f"s_lshl_b32 s{S_WSOFF}, s{S_WSOFF}, 15")
    e.I(f"s_mov_b32 s{S_THR}, 0x{f32bits(cfg.thr):08x}")
    e.I(f"s_mov_b32 s{S_D}, 0")
    stamp_now(e, cfg, TX, 7)
    for i in range(256):
        e.I(f"v_accvgpr_write_b32 a{i}, 0")
    for i in range(40):
        e.I(f"v_mov_b32 v{OF+i}, 0")
    for i in range(16):
        e.I(f"v_mov_b32 v{P0+i}, 0")
    e.I(f"v_mov_b32 v{L_}, 1.0")
    stamp_now(e, cfg, TX, 1)

    def pro_items(pi):
        items = []
        for s4 in range(4):
            ks = 4 * pi + s4
            for dt in range(4):
                rd0 = tr2(WQA + (dt & 1), pslot(pi) * 16384 + (dt >> 1) * 8192 + s4 * 2048, 512)
                if dt == 0:
                    rd = (lambda rd0, s4: lambda fr: [f"ds_read_b128 {v(XF+4*s4,4)}, v{XA+s4} offset:{pslot(pi)*12288}"] + rd0(fr))(rd0, s4)
                else:
                    rd = rd0
                mf = (lambda ks, dt, s4: lambda fr: f"{MFMA} {v(O_ACC+16*dt,16)}, {v(fr,4)}, {v(XF+4*s4,4)}, " + ("0" if ks == 0 else v(O_ACC + 16 * dt, 16)))(ks, dt, s4)
                items.append((rd, mf))
        return items

    e.wait_vm_tag(("P", 0))
    stamp_now(e, cfg, TX, 2)
    e.I("s_barrier")
    stamp_now(e, cfg, TX, 8)
    for pi in range(8):
        e.comment(f"pro-step {pi}")

        def at_bar(pi=pi):
            if pi < 7:
                e.wait_vm_tag(("P", pi + 1), "lgkmcnt(0)")
            else:
                e.I("s_waitcnt lgkmcnt(0)")
            e.I("s_barrier")
            stamp_now(e, cfg, TX, 9 + pi if pi < 7 else 23)
            if pi + 3 <= 7:
                issue_pstage(pi + 3)
        emit_step(e, pro_items(pi), pro_items(pi + 1) if pi < 7 else main_items(0), at_bar, {}, first=(pi == 0))
    for i in range(16):
        e.I(f"v_mov_b32 v{NEGM+i}, 0")
    for k in range(32):
        e.I(f"v_mul_f32 v{O_ACC+2*k}, s{S_C}, v{O_ACC+2*k}")
        e.I(f"v_mul_f32 v{O_ACC+2*k+1}, s{S_C}, v{O_ACC+2*k+1}")
        e.I(f"v_cvt_pk_bf16_f32 v{QF+k}, v{O_ACC+2*k}, v{O_ACC+2*k+1}")
    for i in range(64):
        e.I(f"v_mov_b32 v{O_ACC+i}, 0")

    def body(e):
        e.snaps = {0: [], 1: []}
        for pos in range(4):
            e.comment(f"main step pos {pos}")

            def at_bar(pos=pos):
                stamp_now(e, cfg, TA, ("tau", pos))
                e.I("s_waitcnt vmcnt(3) lgkmcnt(0)")
                stamp_now(e, cfg, TC, ("tau", pos))
                e.I("s_barrier")
                stamp_now(e, cfg, TB, ("tau", pos))
                e.I(f"s_cmp_lt_u32 s{S_TAU}, {14 - pos}")
                e.I(f"s_cbranch_scc1 L_cw_skip{pos}")
                snap = e.snapshot()
                for k in range(3):
                    e.I(f"s_add_u32 m0, s{S_WM+k}, {W_BASE + WO_SUB + ((pos + 3) % 4) * 16384}")
                    e.I(f"buffer_load_dwordx4 v{WOV+k}, {s(SRD_WO,4)}, s{S_WO} offen{cfg.w_pol} lds")
                e.join(f"L_cw_skip{pos}", snap)
                e.I(f"s_add_u32 s{S_WO}, s{S_WO}, {512 if pos % 2 == 0 else 16384 - 512}")
            fill = spread(exp_ops(pos % 2), list(range(9, 24)))
            if pos == 1:
                fill = merge(fill, spread([f"v_mov_b32 v{OF+i}, v{OF+8+i}" for i in range(32)], list(range(0, 8))))
            emit_step(e, main_items(pos), main_items((pos + 1) % 4), at_bar, fill)
            e.I(f"s_mov_b32 s{S_RET}, {pos >> 1}")
            if pos == 0:
                e.I(f"s_and_b32 s{S_T0}, s{S_TAU}, 15")
                e.I("s_cbranch_scc0 L_cfirst")
                e.snaps["first"] = e.snapshot()
            e.I(f"v_cmp_nle_f32 vcc, v{SUM0}, v{T1}" if False else f"v_cmp_nge_f32 vcc, s{S_THR}, v{SUM0}")
            e.I(f"s_cbranch_vccnz L_rare{pos % 2}")
            e.snaps[pos % 2].append(e.snapshot())
            e.I(f"v_add_f32 v{L_}, v{L_}, v{SUM0}")
            e.raw(f"L_ret{pos}:")
            if pos == 3:
                e.I(f"s_add_u32 s{S_TAU}, s{S_TAU}, 4")
                e.I(f"s_and_b32 s{S_T0}, s{S_TAU}, 15")
                e.I("s_cbranch_scc1 L_cq_skip")
                snap = e.snapshot()
                for k in range(8):
                    e.I(f"ds_read_b128 {v(QF+4*k,4)}, v{QA} offset:{k*1024}")
                for i in range(16):
                    e.I(f"v_mov_b32 v{NEGM+i}, 0")
                e.I("s_waitcnt lgkmcnt(0)")
                e.join("L_cq_skip", snap)
                e.I(f"s_cmp_lt_u32 s{S_TAU}, 64")
    e.loop("L_cloop", body, "s_cbranch_scc1 L_cloop")
    snaps = e.snaps

    stamp_now(e, cfg, TX, 16)
    e.I("s_waitcnt lgkmcnt(0)")
    WB, WC = KA, KA + 4
    for k in range(4):
        e.I(f"v_subrev_u32 v{WB+k}, 0x10000, v{WA+k}")
        e.I(f"v_add_u32 v{WC+k}, 0x10000, v{WA+k}")
    plan = wo3_plan()

    def op3_items(nh):
        items = []
        for n8 in range(8):
            nt = nh * 8 + n8
            for sidx in range(8):
                addr, _ = plan[2 * sidx + nh]
                if addr < W_BASE:
                    reg, off = WB, addr
                elif addr < Q_BASE:
                    reg, off = WA, addr - W_BASE
                else:
                    reg, off = WC, addr - Q_BASE
                rd = tr2(reg + (n8 & 3), off + (n8 >> 2) * 256, 4096)
                mf = (lambda nt, sidx: lambda fr: f"{MFMA} {a(16*nt,16)}, {v(fr,4)}, {v(OF+8+4*sidx,4)}, {a(16*nt,16)}")(nt, sidx)
                items.append((rd, mf))
        return items

    def bar_e(n):
        def f():
            e.I(f"s_waitcnt vmcnt({n}) lgkmcnt(0)")
            e.I("s_barrier")
        return f
    fin = finalize_ops(OF + 8)
    emit_step(e, items_PV(0, 1) + items_OP(0, 1, OF + 4), op3_items(0), bar_e(3), spread(fin[:40], list(range(9, 16))), first=True)
    for t in fin[40:]:
        e.I(t)
    stamp_now(e, cfg, TX, 17)

    def store_tile_ops(nt, tb):
        o = []
        for i in range(16):
            o.append(f"v_accvgpr_read_b32 v{tb+i}, a{16*nt+i}")
        for k in range(8):
            o.append(f"v_cvt_pk_bf16_f32 v{tb+k}, v{tb+2*k}, v{tb+2*k+1}")
        o.append(f"s_add_u32 s{S_T0}, s{S_WSOFF}, {nt*2048}")
        o.append(f"buffer_store_dwordx4 {v(tb,4)}, v{STV}, {s(SRD_WS,4)}, s{S_T0} offen{cfg.st_pol}")
        o.append(f"buffer_store_dwordx4 {v(tb+4,4)}, v{STV}, {s(SRD_WS,4)}, s{S_T0} offen offset:1024{cfg.st_pol}")
        return o
    for nh in range(2):
        fill = {}
        for n8 in range(8):
            nt = nh * 8 + n8
            if nt >= 1:
                ops = store_tile_ops(nt - 1, O_ACC + 16 * ((nt - 1) % 4))
                fill = merge(fill, spread(ops, [8 * n8 + x for x in range(2, 8)]))
        emit_step(e, op3_items(nh), op3_items(1) if nh == 0 else None, bar_e(12), fill)
        stamp_now(e, cfg, TX, 18 + nh)
    for t in store_tile_ops(15, O_ACC + 48):
        e.I(t)
    stamp_now(e, cfg, TX, 20)
    if cfg.t2:
        e.I("s_waitcnt vmcnt(0)")
        stamp_now(e, cfg, TX, 21)
        e.I("s_barrier")
        e.I("s_barrier")
        stamp_now(e, cfg, TX, 24)
        if cfg.prof:
            e.I(f"v_mov_b32 v100, v{TA}")
            e.I(f"v_mov_b32 v101, v{TB}")
            e.I(f"v_mov_b32 v102, v{TC}")
            e.I(f"v_mov_b32 v103, v{TX}")
        e.flush()
        e.I("s_branch L_reduce")
    else:
        if cfg.prof:
            e.I("s_waitcnt vmcnt(0)")
            stamp_now(e, cfg, TX, 21)
            stamp_dump(e, cfg, [TA, TB, TC, TX], T0)
        e.I("s_endpgm")

    e.restore(snaps["first"])
    e.raw("L_cfirst:")
    for t in finalize_ops(OF + 8):
        e.I(t)
    e.I(f"s_mov_b32 s{S_D}, 0xff800000")
    for par in range(2):
        if par == 1:
            e.restore(snaps[1][0])
        for sn in snaps[par]:
            e.join(None, sn)
        e.raw(f"L_rare{par}:")
        for t in rare_ops(par):
            e.I(t)
        e.I(f"s_cmp_eq_u32 s{S_RET}, 0")
        e.flush(lgkm=False)
        e.I(f"s_cbranch_scc1 L_ret{par}")
        e.I(f"s_branch L_ret{par+2}")


LACC, LF, LKV, LVV, LWQV, LWQA, LQW, LT = 0, 96, 112, 116, 117, 121, 123, 124
LXA = LACC
LTA, LTC = 125, 126


def xreg(f):
    return a(4 * f, 4) if f < 64 else v(128 + 4 * (f - 64), 4)


def loader_wave(e, cfg):
    e.restore(dict(idx=e.idx, valu_w={}, trans_w={}, mfma_w={}, mfma_c={}, valu_sw={}, store_d={}, m0_w=-100, ds=[], vm=[]))
    e.raw("L_loader:")
    e.I("s_nop 1")
    e.vm_out = []
    L = LANE0
    t0, t1 = LT, LT + 1
    e.I(f"v_lshrrev_b32 v{t0}, 4, v{L}")
    e.I(f"v_and_b32 v{t1}, 15, v{L}")
    e.I(f"v_xor_b32 v{LKV}, v{t0}, v{t1}")
    e.I(f"v_lshlrev_b32 v{LKV}, 4, v{LKV}")
    e.I(f"v_lshl_add_u32 v{LKV}, v{t0}, 8, v{LKV}")
    for k in range(1, 4):
        e.I(f"v_xor_b32 v{LKV+k}, {64*k}, v{LKV}")
    e.I(f"v_lshlrev_b32 v{LVV}, 2, v{t0}")
    e.I(f"v_xor_b32 v{LVV}, v{LVV}, v{t1}")
    e.I(f"v_lshlrev_b32 v{LVV}, 4, v{LVV}")
    e.I(f"v_lshl_add_u32 v{LVV}, v{t0}, 8, v{LVV}")
    e.I(f"s_lshl_b32 s{S_KOFF}, s{S_B}, 22")
    e.I(f"s_add_u32 s{S_KOFF}, s{S_KOFF}, s{S_WOB}")
    e.I(f"s_mov_b32 s{S_VOFF}, s{S_KOFF}")

    def kv_ops(slot, tag, k=True, vv=True):
        o = []
        if k:
            for h4 in range(2):
                o.append((f"s_mov_b32 m0, {KV_BASE + slot*16384 + h4*4096}", None))
                for pq in range(4):
                    o.append((f"buffer_load_dwordx4 v{LKV+pq}, {s(SRD_K,4)}, s{S_KOFF} offen offset:{pq*1024}{cfg.kv_nt} lds", tag))
                o.append((f"s_add_u32 s{S_KOFF}, s{S_KOFF}, 4096", None))
        if vv:
            for h4 in range(2):
                o.append((f"s_mov_b32 m0, {KV_BASE + slot*16384 + 8192 + h4*4096}", None))
                for pq in range(4):
                    o.append((f"buffer_load_dwordx4 v{LVV}, {s(SRD_V,4)}, s{S_VOFF} offen offset:{pq*1024}{cfg.kv_nt} lds", tag))
                o.append((f"s_add_u32 s{S_VOFF}, s{S_VOFF}, 4096", None))
        return o

    def emit_ops(e, ops):
        for t, tag in ops:
            if t.startswith("buffer") and len(e.vm_out) >= 63:
                e.I("s_waitcnt vmcnt(60)")
            e.I(t, tag=tag)

    def wq_ops(slot, cb, colreg, tag):
        o = []
        for h4 in range(2):
            o.append((f"s_mov_b32 m0, {W_BASE + slot*16384 + WQ_SUB + h4*4096}", None))
            o.append((f"s_add_u32 s{S_T0}, s{colreg}, {(64*cb + 32*h4) * 8192}", None))
            for pq in range(4):
                o.append((f"buffer_load_dwordx4 v{LWQV+pq}, {s(SRD_WQ,4)}, s{S_T0} offen offset:{pq*1024}{cfg.w_pol} lds", tag))
        return o

    emit_ops(e, kv_ops(0, ("st", 0)))
    e.I(f"s_sub_u32 s{S_VOFF}, s{S_VOFF}, 8192")
    pat_wqv(e, LWQV, L, t0, t1)
    for k in range(1, 4):
        e.I(f"v_add_u32 v{LWQV+k}, {k*(65536-1024)}, v{LWQV}")
    e.I(f"s_lshl_b32 s{S_QCOL}, s{S_HG}, 10")
    e.I(f"s_add_u32 s{S_QCOL}, s{S_QCOL}, 256")
    e.I(f"s_add_u32 s{S_QCOLN}, s{S_QCOL}, 128")
    emit_ops(e, wq_ops(3, 0, S_QCOL, ("st", -1)))
    emit_ops(e, kv_ops(1, ("st", 1)))
    emit_ops(e, kv_ops(2, ("st", 2)))
    pat_tr(e, LWQA, L, t0, 10, 7, 1, True, W_BASE + WQ_SUB)
    e.I(f"v_xor_b32 v{LWQA+1}, 64, v{LWQA}")
    e.I(f"v_lshlrev_b32 v{LQW}, 4, v{L}")
    e.I(f"v_add_u32 v{LQW}, 0x{Q_BASE:x}, v{LQW}")
    XA_ = LF + 12
    pat_xa(e, XA_, L, t0, t1, f"0x{X_BASE:x}")

    def x_reads(pi):
        for s4 in range(4):
            for qt in range(3):
                e.I(f"ds_read_b128 {xreg((4*pi+s4)*3+qt)}, v{XA_+s4} offset:{pslot(pi)*12288 + qt*4096}")
    for pi in range(8):
        e.I("s_barrier")
        x_reads(pi)
        if pi == 6:
            emit_ops(e, wq_ops(0, 1, S_QCOL, ("st", 0)))
        if pi == 7:
            emit_ops(e, wq_ops(1, 2, S_QCOL, ("st", 1)))
        e.I("s_waitcnt lgkmcnt(0)")

    def lrd(e, slot, fi):
        t, s4 = fi >> 2, fi & 3
        fr = LF + 4 * (fi % 4)
        off = slot * 16384 + s4 * 2048
        e.I(f"ds_read_b64_tr_b16 {v(fr,2)}, v{LWQA+t} offset:{off}")
        e.I(f"ds_read_b64_tr_b16 {v(fr+2,2)}, v{LWQA+t} offset:{off+512}")

    def groups_of(dma):
        groups, cur = [], []
        for t in dma:
            cur.append(t)
            if t[0].startswith("buffer"):
                groups.append(cur); cur = []
        groups[-1] += cur
        return groups

    def pack_ops(t):
        o = []
        for qt in range(3):
            acc = LACC + 16 * (t * 3 + qt)
            for k in range(8):
                o.append(f"v_mul_f32 v{acc+2*k}, s{S_C}, v{acc+2*k}")
                o.append(f"v_mul_f32 v{acc+2*k+1}, s{S_C}, v{acc+2*k+1}")
                o.append(f"v_cvt_pk_bf16_f32 v{acc+k}, v{acc+2*k}, v{acc+2*k+1}")
                if k % 4 == 3:
                    u = k // 4
                    o.append(f"ds_write_b128 v{LQW}, {v(acc+4*u,4)} offset:{qt*8192 + (2*t+u)*1024}")
        return o

    NT = 6

    def lstep(e, tau_pos, cb, slot, head_groups, tail_groups, wait_tag, fill, stamp_lane):
        gi = 0
        for i in range(24):
            fi, qt = divmod(i, 3)
            t, s4 = fi >> 2, fi & 3
            ks = 4 * cb + s4
            fr = LF + 4 * (fi % 4)
            acc = LACC + 16 * (t * 3 + qt)
            c = "0" if ks == 0 else v(acc, 16)
            e.I(f"{MFMA} {v(acc,16)}, {v(fr,4)}, {xreg(ks*3+qt)}, {c}")
            if qt == 0 and fi + 3 < 8:
                lrd(e, slot, fi + 3)
            if i < 17:
                want = (len(head_groups) * (i + 1) + 16) // 17
                while gi < min(want, len(head_groups)):
                    emit_ops(e, head_groups[gi]); gi += 1
            for x in fill.get(i, []):
                e.I(x)
            if i == 17:
                stamp_now(e, cfg, LTA, stamp_lane)
                e.wait_vm_tag(wait_tag, "lgkmcnt(0)")
                stamp_now(e, cfg, LTC, stamp_lane)
                e.I("s_barrier")
                lrd(e, (slot + 1) % 4, 0)
                lrd(e, (slot + 1) % 4, 1)
            if i == 20:
                lrd(e, (slot + 1) % 4, 2)
            if i >= 18:
                emit_ops(e, tail_groups[i - 18])
        assert gi == len(head_groups)

    def step_dma(pos, tagbase):
        u8 = pos + 3
        return groups_of(wq_ops((pos + 2) % 4, u8 % 8, S_QCOL if u8 < 8 else S_QCOLN, ("st", tagbase + 2)) +
                         kv_ops((pos + 3) % 4, ("st", tagbase + 3)))

    e.wait_vm_tag(("st", -1))
    for fi in range(3):
        lrd(e, 3, fi)
    lstep(e, None, 0, 3, [], step_dma(0, 0)[:NT], ("st", 1), {}, 63)

    def body(e):
        e.vm_out = [("st", 1)] * 16 + [("st", 1)] * 8 + [("st", 2)] * 16 + [("st", 2)] * NT
        for pos in range(8):
            e.comment(f"loader step pos {pos}")
            fill = {}
            if pos == 6:
                fill = spread(pack_ops(0), list(range(14, 24)))
            if pos == 7:
                fill = spread(pack_ops(1), list(range(2, 11)))
                fill = merge(fill, {16: [f"v_xor_b32 v{LQW}, 0x1000, v{LQW}",
                                         f"s_mov_b32 s{S_QCOL}, s{S_QCOLN}",
                                         f"s_add_u32 s{S_QCOLN}, s{S_QCOLN}, 128"]})
            lstep(e, pos, (pos + 1) % 8, pos % 4, step_dma(pos, pos)[NT:], step_dma((pos + 1) % 8, pos + 1)[:NT],
                  ("st", pos + 1), fill, ("tau", pos))
        exp = [("st", 9)] * 24 + [("st", 10)] * (16 + NT)
        assert e.vm_out == exp[len(exp) - len(e.vm_out):], e.vm_out
        e.I(f"s_add_u32 s{S_TAU}, s{S_TAU}, 8")
        e.I(f"s_cmp_lt_u32 s{S_TAU}, 48")
    e.loop("L_lloop", body, "s_cbranch_scc1 L_lloop")

    e.vm_out = [("st", 49)] * 24 + [("st", 50)] * (16 + NT)
    e.I("s_waitcnt lgkmcnt(0)")
    e.flush()
    plan = wo3_plan()
    LWOV = LF
    e.I(f"v_mbcnt_lo_u32_b32 v{LT}, -1, 0")
    e.I(f"v_mbcnt_hi_u32_b32 v{LT}, -1, v{LT}")
    pat_wov(e, LWOV, LT, LF + 4, LF + 5)
    e.I(f"v_xor_b32 v{LWOV+1}, 0x80, v{LWOV}")
    e.I(f"s_add_u32 s{S_WO}, s{S_WOB}, {3*131072}")

    def wo3_ops(c):
        addr, _ = plan[c]
        o = []
        for pp in range(8):
            o.append((f"s_mov_b32 m0, {addr + pp*1024}", None))
            o.append((f"s_add_u32 s{S_T0}, s{S_WO}, {(c>>1)*16384 + (c&1)*512 + pp*2048}", None))
            o.append((f"buffer_load_dwordx4 v{LWOV+(pp&1)}, {s(SRD_WO,4)}, s{S_T0} offen{cfg.w_pol} lds", ("wo3", c & 1)))
        return o
    for tau in range(48, 65):
        e.comment(f"loader after B{tau}")
        st = tau + 3
        if st <= 63:
            emit_ops(e, kv_ops(st % 4, ("st", st)))
        elif st == 64:
            emit_ops(e, kv_ops(st % 4, ("st", st), k=False))
        for c in range(16):
            if plan[c][1] == tau:
                emit_ops(e, wo3_ops(c))
        if tau < 64:
            if tau < 63:
                stamp_now(e, cfg, LTA, tau)
            e.wait_vm_tag(("st", tau + 1))
            if tau < 63:
                stamp_now(e, cfg, LTC, tau)
        else:
            e.wait_vm_tag(("wo3", 0))
        e.I("s_barrier")
    e.I("s_waitcnt vmcnt(0)")
    e.I("s_barrier")
    if not cfg.t2:
        stamp_dump(e, cfg, [LTA, LTA, LTC], LT)
        e.raw("L_done:")
        e.I("s_endpgm")
        return
    e.I("s_barrier")
    e.I(f"s_lshl_b32 s{S_T0}, s{S_PB}, 3")
    e.I(f"v_mov_b32 v0, s{S_T0}")
    e.I("v_mov_b32 v1, 1")
    e.I("s_mov_b64 exec, 1")
    e.I(f"buffer_atomic_add v1, v0, {s(SRD_DBG,4)}, 0 offen sc1")
    e.raw("L_poll:")
    e.I(f"buffer_load_dword v2, v0, {s(SRD_DBG,4)}, 0 offen sc1")
    e.I("s_waitcnt vmcnt(0)")
    e.I(f"v_readfirstlane_b32 s{S_T0}, v2")
    e.I(f"s_cmp_ge_u32 s{S_T0}, 8")
    e.I("s_cbranch_scc1 L_polled")
    e.I("s_sleep 2")
    e.I("s_branch L_poll")
    e.raw("L_polled:")
    e.I("s_mov_b64 exec, -1")
    e.I("s_barrier")
    if cfg.prof:
        e.I(f"v_mov_b32 v100, v{LTA}")
        e.I(f"v_mov_b32 v101, v{LTA}")
        e.I(f"v_mov_b32 v102, v{LTC}")
        e.I(f"v_mov_b32 v103, 0")
    e.flush()
    e.raw("L_reduce:")
    e.vm_out = []
    e.I("v_mbcnt_lo_u32_b32 v104, -1, 0")
    e.I("v_mbcnt_hi_u32_b32 v104, -1, v104")
    e.I("v_lshlrev_b32 v105, 4, v104")
    e.I("v_and_b32 v106, 31, v104")
    e.I("v_lshlrev_b32 v106, 11, v106")
    e.I("v_lshrrev_b32 v107, 5, v104")
    e.I("v_lshl_add_u32 v106, v107, 4, v106")
    e.I(f"s_mul_i32 s{S_T2}, s{S_WAVE}, 3")
    for k in range(3):
        e.I(f"s_add_u32 s{S_T0}, s{S_T2}, {k}")
        e.I(f"s_lshr_b32 s{S_T1}, s{S_T0}, 2")
        e.I(f"s_and_b32 s{S_T0}, s{S_T0}, 3")
        e.I(f"s_lshl_b32 s{S_PM+k}, s{S_HG}, 2")
        e.I(f"s_add_u32 s{S_PM+k}, s{S_PM+k}, s{S_T0}")
        e.I(f"s_lshl_b32 s{S_PG+k}, s{S_T1}, 5")
        e.I(f"s_add_u32 s{S_T0}, s{S_PG+k}, s{S_PM+k}")
        e.I(f"s_mul_i32 s{S_T1}, s{S_PB}, 768")
        e.I(f"s_add_u32 s{S_T0}, s{S_T0}, s{S_T1}")
        e.I(f"s_lshl_b32 s{S_T0}, s{S_T0}, 10")
        for hg in range(8):
            e.I(f"buffer_load_dwordx4 {v(32*k+4*hg,4)}, v105, {s(SRD_WS,4)}, s{S_T0} offen{cfg.red_ld_pol}", tag=(k, hg))
            if hg < 7:
                e.I(f"s_add_u32 s{S_T0}, s{S_T0}, {96*1024}")
    e.I(f"s_mov_b32 s{S_T2}, 0xffff0000")
    for k in range(3):
        e.I(f"s_mul_i32 s{S_T0}, s{S_B}, 96")
        e.I(f"s_add_u32 s{S_T0}, s{S_T0}, s{S_PG+k}")
        e.I(f"s_lshl_b32 s{S_T0}, s{S_T0}, 11")
        e.I(f"s_lshl_b32 s{S_T1}, s{S_P}, 10")
        e.I(f"s_add_u32 s{S_T0}, s{S_T0}, s{S_T1}")
        e.I(f"s_lshl_b32 s{S_T1}, s{S_PM+k}, 5")
        e.I(f"s_add_u32 s{S_T0}, s{S_T0}, s{S_T1}")
        acc = 108
        for hg in range(8):
            e.wait_vm_tag((k, hg))
            for q in range(4):
                src = 32 * k + 4 * hg + q
                if hg == 0:
                    e.I(f"v_lshlrev_b32 v{acc+2*q}, 16, v{src}")
                    e.I(f"v_and_b32 v{acc+1+2*q}, s{S_T2}, v{src}")
                else:
                    e.I(f"v_lshlrev_b32 v116, 16, v{src}")
                    e.I(f"v_and_b32 v117, s{S_T2}, v{src}")
                    e.I(f"v_add_f32 v{acc+2*q}, v{acc+2*q}, v116")
                    e.I(f"v_add_f32 v{acc+1+2*q}, v{acc+1+2*q}, v117")
        for q in range(4):
            e.I(f"v_cvt_pk_bf16_f32 v{32*k+q}, v{acc+2*q}, v{acc+1+2*q}")
        e.I(f"buffer_store_dwordx4 {v(32*k,4)}, v106, {s(SRD_OUT,4)}, s{S_T0} offen", tag="o")
    if cfg.prof:
        e.I("s_waitcnt vmcnt(0)")
        stamp_now(e, cfg, 103, 25)
        stamp_dump(e, cfg, [100, 101, 102, 103], 104)
    e.raw("L_done:")
    e.I("s_endpgm")


def reduce_kernel(e, cfg):
    e.raw(".p2align 8")
    e.raw(".globl red_kernel")
    e.raw(".type red_kernel,@function")
    e.raw("red_kernel:")
    e.I("s_cmp_ge_u32 s2, 768")
    e.I("s_cbranch_scc1 L_rdone")
    e.I("s_load_dwordx2 s[4:5], s[0:1], 96")
    e.I("s_load_dwordx2 s[8:9], s[0:1], 80")
    e.I("v_lshrrev_b32 v1, 6, v0")
    e.I("v_and_b32 v2, 63, v0")
    e.I("v_readfirstlane_b32 s12, v1")
    e.I("s_lshl_b32 s13, s2, 2")
    e.I("s_add_u32 s13, s13, s12")
    e.I("s_mul_i32 s14, s13, 43691")
    e.I("s_lshr_b32 s14, s14, 22")
    e.I("s_mul_i32 s15, s14, 96")
    e.I("s_sub_u32 s15, s13, s15")
    e.I("s_mul_i32 s16, s14, 768")
    e.I("s_add_u32 s16, s16, s15")
    e.I("s_lshl_b32 s16, s16, 10")
    e.I("v_lshlrev_b32 v3, 4, v2")
    e.I("s_waitcnt lgkmcnt(0)")
    e.I(f"s_mov_b32 s6, 0x{256*96*1024:x}")
    e.I("s_mov_b32 s7, 0x20000")
    e.I(f"s_mov_b32 s10, 0x{16*96*1024*2:x}")
    e.I("s_mov_b32 s11, 0x20000")
    for hg in range(8):
        e.I(f"buffer_load_dwordx4 {v(8+4*hg,4)}, v3, s[4:7], s16 offen{cfg.red_ld_pol}")
        if hg < 7:
            e.I(f"s_add_u32 s16, s16, {96*1024}")
    e.I("s_and_b32 s17, s14, 15")
    e.I("s_lshr_b32 s18, s14, 4")
    e.I("s_lshr_b32 s19, s15, 5")
    e.I("s_and_b32 s20, s15, 31")
    e.I("s_mul_i32 s17, s17, 96")
    e.I("s_lshl_b32 s19, s19, 5")
    e.I("s_add_u32 s17, s17, s19")
    e.I("s_lshl_b32 s17, s17, 11")
    e.I("s_lshl_b32 s18, s18, 10")
    e.I("s_add_u32 s17, s17, s18")
    e.I("s_lshl_b32 s20, s20, 5")
    e.I("s_add_u32 s17, s17, s20")
    e.I("v_and_b32 v4, 31, v2")
    e.I("v_lshlrev_b32 v4, 11, v4")
    e.I("v_lshrrev_b32 v5, 5, v2")
    e.I("v_lshl_add_u32 v4, v5, 4, v4")
    e.I("s_mov_b32 s21, 0xffff0000")
    for hg in range(8):
        e.I(f"s_waitcnt vmcnt({7-hg})")
        for k in range(4):
            src = 8 + 4 * hg + k
            if hg == 0:
                e.I(f"v_lshlrev_b32 v{40+2*k}, 16, v{src}")
                e.I(f"v_and_b32 v{41+2*k}, s21, v{src}")
            else:
                e.I(f"v_lshlrev_b32 v48, 16, v{src}")
                e.I(f"v_and_b32 v49, s21, v{src}")
                e.I(f"v_add_f32 v{40+2*k}, v{40+2*k}, v48")
                e.I(f"v_add_f32 v{41+2*k}, v{41+2*k}, v49")
    for k in range(4):
        e.I(f"v_cvt_pk_bf16_f32 v{52+k}, v{40+2*k}, v{41+2*k}")
    e.I("buffer_store_dwordx4 v[52:55], v4, s[8:11], s17 offen")
    e.raw("L_rdone:")
    e.I("s_endpgm")


HEADER = open("cdna_kernels/" + NAME + ".s.ref").read().split("; Override launch")[0]


def build(cfg, fname):
    e = Emit()
    e.raw(HEADER.rstrip("\n"))
    if cfg.t2:
        e.raw(f"; @launch grid=(256,1,1) block=(256,1,1) lds={LDS_BYTES}")
    else:
        e.raw(f"; @launch kernel={NAME}_kernel grid=(256,1,1) block=(256,1,1) lds={LDS_BYTES}")
        e.raw("; @launch kernel=red_kernel grid=(768,1,1) block=(256,1,1) lds=0")
    e.raw('.amdgcn_target "amdgcn-amd-amdhsa--gfx950"')
    e.raw(".text")
    e.raw(f".globl {NAME}_kernel")
    e.raw(".p2align 8")
    e.raw(f".type {NAME}_kernel,@function")
    e.raw(f"{NAME}_kernel:")
    prologue_common(e, cfg)
    compute_wave(e, cfg)
    loader_wave(e, cfg)
    kernels = [(NAME + "_kernel", 512, 256)]
    if not cfg.t2:
        e2 = Emit()
        reduce_kernel(e2, cfg)
        e.lines += e2.lines
        kernels.append(("red_kernel", 64, 64))
    e.raw('.section .rodata,"a"')
    for nm, nv, acc in kernels:
        e.raw(".p2align 6")
        e.raw(f".amdhsa_kernel {nm}")
        e.raw(f"  .amdhsa_next_free_vgpr {nv}")
        e.raw("  .amdhsa_next_free_sgpr 102")
        e.raw(f"  .amdhsa_accum_offset {acc}")
        e.raw("  .amdhsa_group_segment_fixed_size 0")
        e.raw("  .amdhsa_kernarg_size 104")
        e.raw("  .amdhsa_user_sgpr_count 2")
        e.raw("  .amdhsa_user_sgpr_kernarg_segment_ptr 1")
        e.raw("  .amdhsa_system_sgpr_workgroup_id_x 1")
        e.raw(".end_amdhsa_kernel")
    open(fname, "w").write(e.text())
    print(f"{fname}: {e.ninstr} instrs, {e.nnop} nop states")


if __name__ == "__main__":
    cfg = Cfg()
    for kv in sys.argv[2:]:
        k, _, val = kv.partition("=")
        cur = getattr(cfg, k)
        if isinstance(cur, bool):
            val = val in ("1", "true", "True")
        elif isinstance(cur, int):
            val = int(val)
        elif isinstance(cur, float):
            val = float(val)
        else:
            val = (" " + val.replace("+", " ")) if val else ""
        setattr(cfg, k, val)
    build(cfg, sys.argv[1] if len(sys.argv) > 1 else "k2.s")
```
